```python
import torch

def _softmax(x, axis=-1):
    return torch.softmax(x, dim=axis)

def _gelu(x):
    return torch.nn.functional.gelu(x, approximate='tanh')

def _silu(x):
    return torch.nn.functional.silu(x)

def _sigmoid(x):
    return torch.sigmoid(x)

def _layernorm(x, axis=-1, eps=1e-05):
    m = x.mean(dim=axis, keepdim=True)
    v = x.var(dim=axis, keepdim=True, unbiased=False)
    return (x - m) / torch.sqrt(v + eps)

def _scatter_add(tgt, idx, src, axis=0):
    return tgt.clone().index_add_(axis, idx, src)

def _segment_sum(src, seg, n):
    out = torch.zeros((n,) + src.shape[1:], dtype=src.dtype)
    return out.index_add_(0, seg, src)

def _pad(x, pw):
    flat = tuple((v for pair in reversed(pw) for v in pair))
    return torch.nn.functional.pad(x, flat)
kernel_name = 'parallel_sum__memory_aug_recurrent_mem_tr__glu_gated_glu__prompt'

def setup_inputs():

    _w = lambda a: (lambda t: t.to(torch.bfloat16) if t.is_floating_point() else t)(torch.as_tensor(a))

    def _A_setup():
        B, S, Dm = (1, 2048, 512)
        H, Dh = (32, 128)
        M, seg = (8, 32)
        seg = min(seg, S)
        S = S // seg * seg
        return {'x': _w((lambda *s: torch.randn(*s, dtype=torch.bfloat16) * 0.05)(B, S, Dm)), 'mem0': _w((lambda *s: torch.randn(*s, dtype=torch.bfloat16) * 1.6)(B, M, Dm)), 'Wq': _w((lambda *s: torch.randn(*s, dtype=torch.bfloat16) * 0.8)(Dm, H, Dh) * Dm ** (-0.5)), 'Wk': _w((lambda *s: torch.randn(*s, dtype=torch.bfloat16) * 0.8)(Dm, H, Dh) * Dm ** (-0.5)), 'Wv': _w((lambda *s: torch.randn(*s, dtype=torch.bfloat16) * 1.6)(Dm, H, Dh) * Dm ** (-0.5)), 'Wo': _w((lambda *s: torch.randn(*s, dtype=torch.bfloat16) * 1.6)(H, Dh, Dm) * (H * Dh) ** (-0.5)), 'seg_len': seg}
    _A_in = _A_setup()

    def _B_setup():
        B, S, D, F = (1, 2048, 512, 1792)
        return {'x': _w((lambda *s: torch.randn(*s, dtype=torch.bfloat16) * 0.05)(B, S, D)), 'w_gate': _w((lambda *s: torch.randn(*s, dtype=torch.bfloat16) * 0.05)(D, F)), 'w_up': _w((lambda *s: torch.randn(*s, dtype=torch.bfloat16) * 0.05)(D, F)), 'w_down': _w((lambda *s: torch.randn(*s, dtype=torch.bfloat16) * 0.05)(F, D))}
    _B_in = _B_setup()
    return {'A_x': _A_in['x'], 'A_mem0': _A_in['mem0'], 'A_Wq': _A_in['Wq'], 'A_Wk': _A_in['Wk'], 'A_Wv': _A_in['Wv'], 'A_Wo': _A_in['Wo'], 'A_seg_len': _A_in['seg_len'], 'B_x': _B_in['x'], 'B_w_gate': _B_in['w_gate'], 'B_w_up': _B_in['w_up'], 'B_w_down': _B_in['w_down']}

def reference(A_x, A_mem0, A_Wq, A_Wk, A_Wv, A_Wo, A_seg_len, B_x, B_w_gate, B_w_up, B_w_down):

    def _A_ref(x, mem0, Wq, Wk, Wv, Wo, seg_len):
        B, S, Dm = x.shape
        H, Dh = (Wq.shape[1], Wq.shape[2])
        M = mem0.shape[1]
        scale = Dh ** (-0.5)
        n_seg = S // seg_len
        L = M + seg_len
        idx = torch.arange(L)
        mask = (idx[:, None] < M) | (idx[:, None] >= idx[None, :])
        mem = mem0
        outs = []
        for s in range(n_seg):
            xs = x[:, s * seg_len:(s + 1) * seg_len, :].clone()
            h = torch.concatenate([mem, xs], axis=1)
            q = torch.einsum('btd,dhe->bhte', h, Wq)
            k = torch.einsum('btd,dhe->bhte', h, Wk)
            v = torch.einsum('btd,dhe->bhte', h, Wv)
            scores = torch.einsum('bhqe,bhke->bhqk', q, k) * scale
            scores = torch.where(mask[None, None], scores, -1000000000.0)
            p = _softmax(scores, axis=-1)
            o = torch.einsum('bhqk,bhke->bhqe', p, v)
            o = torch.einsum('bhte,hed->btd', o, Wo)
            mem = o[:, :M, :].clone()
            outs.append(o[:, M:, :])
        return torch.concatenate(outs, axis=1)

    def _B_ref(x, w_gate, w_up, w_down):
        g = torch.einsum('bsd,df->bsf', x, w_gate)
        u = torch.einsum('bsd,df->bsf', x, w_up)
        h = _sigmoid(g) * u
        return torch.einsum('bsf,fd->bsd', h, w_down)
    x = A_x
    xn = _layernorm(x, axis=-1)
    return x + _A_ref(xn, A_mem0, A_Wq, A_Wk, A_Wv, A_Wo, A_seg_len) + _B_ref(xn, B_w_gate, B_w_up, B_w_down)
```

```python
MB = 1 << 20
KB = 1 << 10
XN = 0
WQKV = 2 * MB
WGU = 14 * MB
WO = 18 * MB
WD = 22 * MB
QF = 24 * MB
KF = 40 * MB
VF = 56 * MB
HF = 72 * MB
OF = 80 * MB
KMF = 96 * MB
VMF = 104 * MB
PART = 112 * MB
MEMF = 113 * MB
FLAGS = 114 * MB
WS_BYTES = 268435456


class Asm:
    def __init__(self):
        self.lines = []
        self.uid = 0

    def __call__(self, s):
        for l in s.strip('\n').split('\n'):
            self.lines.append('    ' + l.strip() if not l.strip().endswith(':') else l.strip())

    def label(self, name):
        self.lines.append(name + ':')

    def newlabel(self, base):
        self.uid += 1
        return f'L_{base}_{self.uid}'

    def raw(self, s):
        self.lines.append(s)

    def text(self):
        return '\n'.join(self.lines) + '\n'


def kernel_header(a, name):
    a.raw('.text')
    a.raw(f'.globl {name}')
    a.raw('.p2align 8')
    a.raw(f'.type {name},@function')
    a.label(name)


def kernel_desc(name, vgpr, sgpr=102, accum=None, nfv=None):
    if accum is None:
        accum = (vgpr + 3) // 4 * 4
    if nfv is None:
        nfv = vgpr
    return f'''.section .rodata,"a"
.p2align 6
.amdhsa_kernel {name}
  .amdhsa_next_free_vgpr {nfv}
  .amdhsa_next_free_sgpr {sgpr}
  .amdhsa_accum_offset {accum}
  .amdhsa_group_segment_fixed_size 0
  .amdhsa_kernarg_size 112
  .amdhsa_user_sgpr_count 2
  .amdhsa_user_sgpr_kernarg_segment_ptr 1
  .amdhsa_system_sgpr_workgroup_id_x 1
.end_amdhsa_kernel
'''


def srd(a, d, base, nbytes, off=0):
    if off:
        a(f's_add_u32 s{d}, s{base}, {off}')
        a(f's_addc_u32 s{d+1}, s{base+1}, 0')
    else:
        a(f's_mov_b32 s{d}, s{base}')
        a(f's_mov_b32 s{d+1}, s{base+1}')
    a(f's_and_b32 s{d+1}, s{d+1}, 0xffff')
    a(f's_mov_b32 s{d+2}, {nbytes}')
    a(f's_mov_b32 s{d+3}, 0x00020000')
```

```python
from common import *

AT_WGS = 512


def gen_attn(a):
    name = 'attn_kernel'
    kernel_header(a, name)
    a(f'''
    s_cmp_ge_u32 s2, {AT_WGS}
    s_cbranch_scc1 L_at_done
    s_load_dwordx2 s[8:9], s[0:1], 104
    v_lshrrev_b32 v2, 6, v0
    v_and_b32 v6, 63, v0
    v_lshlrev_b32 v1, 4, v6
    v_readfirstlane_b32 s3, v2
    v_lshlrev_b32 v3, 3, v6
    v_and_b32 v8, 15, v6             ; col
    v_lshrrev_b32 v9, 4, v6          ; g
    s_lshl_b32 s4, s2, 2
    s_add_u32 s4, s4, s3             ; unit
    s_lshr_b32 s5, s4, 5             ; seg
    s_and_b32 s6, s4, 31             ; h
    s_waitcnt lgkmcnt(0)
    ''')
    srd(a, 40, 8, WS_BYTES)
    a(f'''
    s_lshl_b32 s10, s5, 8
    s_lshl_b32 s11, s6, 2
    s_add_u32 s10, s10, s11
    s_lshl_b32 s10, s10, 10
    s_add_u32 s12, s10, {QF}
    s_add_u32 s13, s12, {128*KB}
    s_add_u32 s14, s10, {KF}
    s_add_u32 s15, s14, {128*KB}
    s_add_u32 s20, s10, {OF}
    s_add_u32 s21, s20, {128*KB}
    s_lshl_b32 s16, s5, 7
    s_add_u32 s16, s16, s11
    s_lshl_b32 s16, s16, 10
    s_add_u32 s16, s16, {KMF}
    s_lshl_b32 s17, s5, 8
    s_lshl_b32 s11, s6, 3
    s_add_u32 s17, s17, s11          ; seg*256 + h*8
    s_lshl_b32 s18, s17, 9
    s_add_u32 s18, s18, {VMF}
    s_lshl_b32 s17, s17, 10
    s_add_u32 s17, s17, {VF}
    s_add_u32 s19, s17, 4096
    s_mov_b32 s69, 0x3db504f3
    s_mov_b32 s70, 0x3fb8aa3b
    ''')
    for qt in range(2):
        for ks in range(4):
            a(f'buffer_load_dwordx4 v[{10+qt*16+ks*4}:{13+qt*16+ks*4}], v1, s[40:43], s{12+qt} offen offset:{ks*1024}')
    for ks in range(4):
        a(f'buffer_load_dwordx4 v[{74+ks*4}:{77+ks*4}], v1, s[40:43], s16 offen offset:{ks*1024}')
    for kb in range(2):
        for ks in range(4):
            a(f'buffer_load_dwordx4 v[{42+kb*16+ks*4}:{45+kb*16+ks*4}], v1, s[40:43], s{14+kb} offen offset:{ks*1024}')
    for et in range(8):
        a(f'buffer_load_dwordx2 v[{90+et*8}:{91+et*8}], v3, s[40:43], s18 offen offset:{et*512}')
        a(f'buffer_load_dwordx4 v[{92+et*8}:{95+et*8}], v1, s[40:43], s{17 if et < 4 else 19} offen offset:{(et%4)*1024}')
        a(f'v_mov_b32 v{96+et*8}, 0')
        a(f'v_mov_b32 v{97+et*8}, 0')
    a('v_cmp_gt_u32 s[60:61], 32, v6')
    a('v_lshlrev_b32 v4, 2, v9')
    for r in range(4):
        a(f'v_add_u32 v5, {r}, v4')
        a(f'v_cmp_le_u32 s[{72+2*r}:{73+2*r}], v5, v8')
    tiles = [(154, 'm', 0), (158, 'x0', 0), (162, 'm', 1), (166, 'x0', 1), (170, 'x1', 1)]
    a('s_waitcnt vmcnt(16)')
    for (reg, kb, qt) in tiles:
        for ks in range(4):
            if kb == 'm':
                A = 74 + ks * 4
            elif kb == 'x0':
                A = 42 + ks * 4
            else:
                A = 58 + ks * 4
            B = 10 + qt * 16 + ks * 4
            acc = f'v[{reg}:{reg+3}]'
            a(f'v_mfma_f32_16x16x32_bf16 {acc}, v[{A}:{A+3}], v[{B}:{B+3}], {"0" if ks == 0 else acc}')
    a('s_nop 7')
    a('s_nop 1')
    a('v_mov_b32 v255, 0xf149f2ca')
    for i in range(0, 20, 2):
        r = 154 + i
        a(f'''
        v_cvt_pk_bf16_f32 v250, v{r}, v{r+1}
        v_lshlrev_b32 v251, 16, v250
        v_and_b32 v252, 0xffff0000, v250
        v_mul_f32 v251, s69, v251
        v_mul_f32 v252, s69, v252
        v_cvt_pk_bf16_f32 v250, v251, v252
        v_lshlrev_b32 v{r}, 16, v250
        v_and_b32 v{r+1}, 0xffff0000, v250
        ''')
    for r in range(4):
        a(f'v_cndmask_b32 v{154+r}, v255, v{154+r}, s[60:61]')
        a(f'v_cndmask_b32 v{162+r}, v255, v{162+r}, s[60:61]')
        a(f'v_cndmask_b32 v{158+r}, v255, v{158+r}, s[{72+2*r}:{73+2*r}]')
        a(f'v_cndmask_b32 v{170+r}, v255, v{170+r}, s[{72+2*r}:{73+2*r}]')

    def xred(op, r, t):
        a(f'''
        v_mov_b32 v{t}, v{r}
        s_nop 1
        v_permlane32_swap_b32 v{r}, v{t}
        {op} v{r}, v{r}, v{t}
        v_mov_b32 v{t}, v{r}
        s_nop 1
        v_permlane16_swap_b32 v{r}, v{t}
        {op} v{r}, v{r}, v{t}
        ''')

    for (base, n, pdst) in ((154, 8, 174), (162, 12, 178)):
        a(f'v_max3_f32 v250, v{base}, v{base+1}, v{base+2}')
        for i in range(3, n, 2):
            if i + 1 < n:
                a(f'v_max3_f32 v250, v250, v{base+i}, v{base+i+1}')
            else:
                a(f'v_max_f32 v250, v250, v{base+i}')
        xred('v_max_f32', 250, 251)
        a('v_mul_f32 v250, s70, v250')
        for i in range(n):
            a(f'v_fma_f32 v{base+i}, v{base+i}, s70, -v250')
        for i in range(n):
            a(f'v_exp_f32 v{base+i}, v{base+i}')
        a('s_nop 0')
        a(f'v_add_f32 v250, v{base}, v{base+1}')
        for i in range(2, n):
            a(f'v_add_f32 v250, v250, v{base+i}')
        xred('v_add_f32', 250, 251)
        a('v_rcp_f32 v250, v250')
        a('s_nop 0')
        for i in range(n):
            a(f'v_mul_f32 v{base+i}, v{base+i}, v250')
        for i in range(0, n, 2):
            a(f'v_cvt_pk_bf16_f32 v{pdst+i//2}, v{base+i}, v{base+i+1}')
    a('''
    v_mov_b32 v184, 0
    v_mov_b32 v185, 0
    s_waitcnt vmcnt(0)
    s_nop 1
    ''')
    for et in range(8):
        V = 90 + et * 8
        o0 = 186 + (et * 2) * 4
        o1 = o0 + 4
        a(f'v_mfma_f32_16x16x32_bf16 v[{o0}:{o0+3}], v[{V}:{V+3}], v[174:177], 0')
        a(f'v_mfma_f32_16x16x32_bf16 v[{o1}:{o1+3}], v[{V}:{V+3}], v[178:181], 0')
        a(f'v_mfma_f32_16x16x32_bf16 v[{o1}:{o1+3}], v[{V+4}:{V+7}], v[182:185], v[{o1}:{o1+3}]')
    a('s_nop 7')
    a('s_nop 1')
    for qt in range(2):
        for p in range(4):
            a0 = 186 + ((2 * p) * 2 + qt) * 4
            a1 = 186 + ((2 * p + 1) * 2 + qt) * 4
            d = 10 + (qt * 4 + p) * 4
            a(f'''
            v_cvt_pk_bf16_f32 v{d}, v{a0}, v{a0+1}
            v_cvt_pk_bf16_f32 v{d+1}, v{a0+2}, v{a0+3}
            v_cvt_pk_bf16_f32 v{d+2}, v{a1}, v{a1+1}
            v_cvt_pk_bf16_f32 v{d+3}, v{a1+2}, v{a1+3}
            buffer_store_dwordx4 v[{d}:{d+3}], v1, s[40:43], s{20+qt} offen offset:{p*1024}
            ''')
    a.label('L_at_done')
    a('s_endpgm')
    return kernel_desc(name, 256, 80)
```

```python
from common import *

CH_WGS = 256
CH_LDS = 145 * KB
SCR = 128 * KB
OFR = 140 * KB
ROLE = 144 * KB
SPIN = 1 << 20


def gen_chain(a):
    name = 'chain_kernel'
    kernel_header(a, name)
    a(f'''
    s_cmp_ge_u32 s2, {CH_WGS}
    s_cbranch_scc1 L_ch_done
    s_load_dwordx2 s[8:9], s[0:1], 104
    s_load_dwordx2 s[10:11], s[0:1], 96
    v_lshrrev_b32 v2, 6, v0
    v_and_b32 v6, 63, v0             ; lane
    v_lshlrev_b32 v1, 4, v6          ; lane*16
    v_readfirstlane_b32 s3, v2       ; wave
    v_lshlrev_b32 v3, 3, v6          ; lane*8
    v_lshlrev_b32 v7, 2, v6          ; lane*4
    s_waitcnt lgkmcnt(0)
    ''')
    srd(a, 40, 8, WS_BYTES)
    srd(a, 44, 10, 256)
    a(f'''
    s_cmp_lg_u32 s3, 0
    s_cbranch_scc1 L_ch_role_wait
    s_getreg_b32 s12, hwreg(HW_REG_XCC_ID)
    s_and_b32 s12, s12, 7
    s_mov_b64 exec, 1
    v_mov_b32 v10, 1
    s_lshl_b32 s13, s12, 2
    v_mov_b32 v11, s13
    v_mov_b32 v12, 1
    v_mov_b32 v13, 32
    v_mov_b32 v16, 36
    buffer_atomic_add v10, v11, s[44:47], 0 offen sc0 sc1
    buffer_atomic_add v12, v13, s[44:47], 0 offen sc0 sc1
    s_waitcnt vmcnt(0)
    v_readfirstlane_b32 s13, v10
    v_readfirstlane_b32 s14, v12
    s_add_u32 s15, s12, 1
    s_cmp_lg_u32 s13, 31
    s_cbranch_scc1 L_ch_role_poll
    v_mov_b32 v14, s15
    v_mov_b32 v15, 0
    buffer_atomic_cmpswap v[14:15], v16, s[44:47], 0 offen sc1
    s_waitcnt vmcnt(0)
    ''')
    a.label('L_ch_role_poll')
    a(f'''
    s_mov_b32 s19, {SPIN}
    ''')
    a.label('L_ch_role_loop')
    a(f'''
    buffer_load_dwordx2 v[18:19], v13, s[44:47], 0 offen sc0 sc1
    s_waitcnt vmcnt(0)
    v_readfirstlane_b32 s16, v18     ; count
    v_readfirstlane_b32 s17, v19     ; winner
    s_cmp_lg_u32 s17, 0
    s_cbranch_scc1 L_ch_role_dec
    s_sub_u32 s19, s19, 1
    s_cmp_eq_u32 s19, 0
    s_cbranch_scc1 L_ch_role_dec
    s_cmp_lt_u32 s16, {CH_WGS}
    s_cbranch_scc1 L_ch_role_loop
    v_mov_b32 v14, 100
    v_mov_b32 v15, 0
    buffer_atomic_cmpswap v[14:15], v16, s[44:47], 0 offen sc1
    s_waitcnt vmcnt(0)
    s_branch L_ch_role_loop
    ''')
    a.label('L_ch_role_dec')
    a(f'''
    s_mov_b32 s18, 0xffff
    s_cmp_eq_u32 s17, 100
    s_cbranch_scc0 L_ch_role_fast
    s_or_b32 s20, s14, 0x100
    s_cmp_lt_u32 s14, 32
    s_cselect_b32 s18, s20, s18
    s_branch L_ch_role_wr
    ''')
    a.label('L_ch_role_fast')
    a('''
    s_cmp_lg_u32 s17, s15
    s_cbranch_scc1 L_ch_role_wr
    s_cmp_lt_u32 s13, 32
    s_cselect_b32 s18, s13, s18
    ''')
    a.label('L_ch_role_wr')
    a(f'''
    v_mov_b32 v10, s18
    v_mov_b32 v11, {ROLE}
    ds_write_b32 v11, v10
    s_waitcnt lgkmcnt(0)
    s_mov_b64 exec, -1
    ''')
    a.label('L_ch_role_wait')
    a(f'''
    s_barrier
    v_mov_b32 v11, {ROLE}
    ds_read_b32 v10, v11
    s_waitcnt lgkmcnt(0)
    v_readfirstlane_b32 s18, v10
    s_cmp_eq_u32 s18, 0xffff
    s_cbranch_scc1 L_ch_done
    s_and_b32 s4, s18, 0xff          ; h
    s_lshr_b32 s5, s18, 8            ; mode
    ''')
    a(f'''
    s_lshl_b32 s6, s4, 3
    s_lshl_b32 s7, s3, 1
    s_add_u32 s6, s6, s7             ; h*8+2w
    s_lshl_b32 s6, s6, 14
    s_add_u32 s6, s6, {WQKV}
    ''')
    for ti in range(6):
        which, sub = ti // 2, ti % 2
        for q4 in range(4):
            a(f's_add_u32 s7, s6, {which*256*16*KB + sub*16*KB + q4*4*KB}')
            for j in range(4):
                kt = q4 * 4 + j
                if ti < 4:
                    r = f'a[{ti*64+kt*4}:{ti*64+kt*4+3}]'
                else:
                    r = f'v[{128+(ti-4)*64+kt*4}:{128+(ti-4)*64+kt*4+3}]'
                a(f'buffer_load_dwordx4 {r}, v1, s[40:43], s7 offen offset:{j*1024}')
    a(f'''
    s_lshl_b32 s6, s3, 20
    s_lshl_b32 s7, s4, 12            ; h*4KB
    s_add_u32 s6, s6, s7
    s_add_u32 s6, s6, {WO}
    s_lshl_b32 s7, s3, 15
    ''')
    for dtl in range(8):
        a(f'''
        s_add_u32 m0, s7, {dtl*4096}
        s_add_u32 s12, s6, {dtl*128*KB}
        ''')
        for ks in range(4):
            a(f'buffer_load_dwordx4 v1, s[40:43], s12 offen offset:{ks*1024} lds')
    a(f'''
    v_add_u32 v4, s7, v1
    v_and_b32 v8, 15, v6             ; col
    v_lshrrev_b32 v9, 4, v6          ; g
    v_lshl_add_u32 v5, v9, 3, v8
    v_lshlrev_b32 v5, 4, v5          ; (g*8+col)*16
    v_cmp_gt_u32 s[60:61], 8, v8
    v_cmp_gt_u32 s[62:63], 32, v6    ; lanes < 32
    s_mul_i32 s12, s3, 3072
    s_add_u32 s12, s12, {SCR}
    v_add_u32 v38, s12, v1
    v_add_u32 v39, {SCR}, v1
    s_lshl_b32 s12, s3, 10
    s_add_u32 s12, s12, {OFR}
    v_add_u32 v2, s12, v1
    v_mov_b32 v24, 0
    v_mov_b32 v25, 0
    v_mov_b32 v32, 0
    v_mov_b32 v33, 0
    s_mov_b32 s50, 0
    s_mov_b32 s51, {MEMF}
    s_mov_b32 s52, {MEMF + 16*KB}
    s_lshl_b32 s53, s4, 14
    s_lshl_b32 s12, s3, 12
    s_add_u32 s53, s53, s12
    s_add_u32 s53, s53, {PART}
    s_lshl_b32 s54, s4, 9
    s_add_u32 s54, s54, {PART}
    s_lshl_b32 s12, s4, 2
    s_add_u32 s12, s12, s3
    s_lshl_b32 s12, s12, 10          ; (h*4+w) KB
    s_add_u32 s55, s12, {KF}
    s_add_u32 s57, s12, {KMF}
    s_lshl_b32 s12, s4, 3
    s_lshl_b32 s13, s3, 1
    s_add_u32 s12, s12, s13          ; h*8+2w
    s_lshl_b32 s13, s12, 10
    s_add_u32 s56, s13, {VF}
    s_lshl_b32 s13, s12, 9
    s_add_u32 s58, s13, {VMF}
    s_lshl_b32 s64, s4, 2
    s_add_u32 s64, s64, {FLAGS}      ; flagA[h]
    s_add_u32 s65, s64, 256          ; flagB[h]
    s_mov_b32 s66, {FLAGS}
    s_mov_b32 s67, {FLAGS + 256}
    s_lshr_b32 s12, s4, 1
    s_lshl_b32 s12, s12, 10
    s_and_b32 s13, s4, 1
    s_lshl_b32 s13, s13, 3
    s_add_u32 s68, s12, s13
    s_mov_b32 s69, 0x3db504f3        ; scale
    s_mov_b32 s70, 0x3fb8aa3b        ; log2e
    v_lshlrev_b32 v36, 4, v8
    v_lshl_add_u32 v37, v9, 8, v36
    ''')
    a(f'''
    s_add_u32 s12, s55, {128*KB}
    buffer_load_dwordx4 v[10:13], v1, s[40:43], s55 offen
    buffer_load_dwordx4 v[14:17], v1, s[40:43], s12 offen
    buffer_load_dwordx4 v[20:23], v1, s[40:43], s56 offen
    buffer_load_dwordx4 v[28:31], v1, s[40:43], s56 offen offset:1024
    s_waitcnt vmcnt(0)
    s_barrier
    s_cmp_eq_u32 s5, 0
    s_cbranch_scc0 L_ch_slow_step
    ''')

    for mode in ('fast', 'slow'):
        ld = 'sc1' if mode == 'fast' else 'sc0 sc1'
        st = '' if mode == 'fast' else 'sc0 sc1'
        L = lambda x: f'L_ch_{mode}_{x}'

        def poll(flagbase_s, target_s, lbl):
            a(f'''
            s_mov_b64 exec, s[62:63]
            s_mov_b32 s19, {SPIN}
            ''')
            a.label(L(lbl + '_loop'))
            a(f'''
            buffer_load_dword v34, v7, s[40:43], s{flagbase_s} offen {ld}
            s_waitcnt vmcnt(0)
            v_cmp_gt_u32 vcc, s{target_s}, v34
            s_cbranch_vccz {L(lbl + '_ok')}
            s_sub_u32 s19, s19, 1
            s_cmp_lg_u32 s19, 0
            s_cbranch_scc1 {L(lbl + '_loop')}
            s_mov_b64 exec, -1
            s_branch L_ch_done
            ''')
            a.label(L(lbl + '_ok'))
            a('s_mov_b64 exec, -1')

        a.label(L('step'))
        a(f'''
        s_cmp_eq_u32 s50, 0
        s_cbranch_scc1 {L('nopoll')}
        ''')
        poll(67, 50, 'pb')
        a.label(L('nopoll'))
        a(f'''
        s_waitcnt vmcnt(0)
        s_add_u32 s12, s51, 4096
        s_add_u32 s13, s51, 8192
        s_add_u32 s14, s51, 12288
        ''')
        for kt in range(16):
            so = ['s51', 's12', 's13', 's14'][kt // 4]
            a(f'buffer_load_dwordx4 v[{64+kt*4}:{67+kt*4}], v1, s[40:43], {so} offen offset:{(kt%4)*1024} {ld}')
        for kt in range(16):
            a(f's_waitcnt vmcnt({15-kt})')
            m = f'v[{64+kt*4}:{67+kt*4}]'
            for ti in range(6):
                acc = f'v[{40+ti*4}:{43+ti*4}]'
                c = '0' if kt == 0 else acc
                if ti < 4:
                    a(f'v_mfma_f32_16x16x32_bf16 {acc}, a[{ti*64+kt*4}:{ti*64+kt*4+3}], {m}, {c}')
                else:
                    b = 128 + (ti - 4) * 64 + kt * 4
                    a(f'v_mfma_f32_16x16x32_bf16 {acc}, {m}, v[{b}:{b+3}], {c}')
        a('''
        s_nop 7
        s_nop 1
        v_cvt_pk_bf16_f32 v34, v40, v41
        v_cvt_pk_bf16_f32 v35, v42, v43
        v_cvt_pk_bf16_f32 v36, v44, v45
        v_cvt_pk_bf16_f32 v37, v46, v47
        v_cvt_pk_bf16_f32 v64, v48, v49
        v_cvt_pk_bf16_f32 v65, v50, v51
        v_cvt_pk_bf16_f32 v66, v52, v53
        v_cvt_pk_bf16_f32 v67, v54, v55
        v_cvt_pk_bf16_f32 v18, v56, v57
        v_cvt_pk_bf16_f32 v19, v58, v59
        v_cvt_pk_bf16_f32 v26, v60, v61
        v_cvt_pk_bf16_f32 v27, v62, v63
        v_mfma_f32_16x16x32_bf16 v[68:71], v[64:67], v[34:37], 0
        v_mfma_f32_16x16x32_bf16 v[72:75], v[10:13], v[34:37], 0
        v_mfma_f32_16x16x32_bf16 v[76:79], v[14:17], v[34:37], 0
        buffer_store_dwordx4 v[64:67], v1, s[40:43], s57 offen
        buffer_store_dwordx2 v[18:19], v3, s[40:43], s58 offen
        buffer_store_dwordx2 v[26:27], v3, s[40:43], s58 offen offset:512
        s_cmp_eq_u32 s50, 63
        s_cbranch_scc1 L_ch_done
        s_nop 5
        ds_write_b128 v38, v[68:71]
        ds_write_b128 v38, v[72:75] offset:1024
        ds_write_b128 v38, v[76:79] offset:2048
        s_waitcnt lgkmcnt(0)
        s_barrier
        ''')
        for w in range(4):
            for t in range(3):
                a(f'ds_read_b128 v[{80+(w*3+t)*4}:{83+(w*3+t)*4}], v39 offset:{(w*3+t)*1024}')
        a(f'''
        s_add_u32 s55, s55, {256*KB}
        s_add_u32 s12, s55, {128*KB}
        buffer_load_dwordx4 v[10:13], v1, s[40:43], s55 offen
        buffer_load_dwordx4 v[14:17], v1, s[40:43], s12 offen
        s_waitcnt lgkmcnt(0)
        ''')
        for i in range(12):
            a(f'v_add_f32 v{68+i}, v{80+i}, v{92+i}')
            a(f'v_add_f32 v{104+i}, v{104+i}, v{116+i}')
        for i in range(12):
            a(f'v_add_f32 v{68+i}, v{68+i}, v{104+i}')
        for i in range(0, 12, 2):
            a(f'''
            v_cvt_pk_bf16_f32 v80, v{68+i}, v{69+i}
            v_lshlrev_b32 v81, 16, v80
            v_and_b32 v82, 0xffff0000, v80
            v_mul_f32 v81, s69, v81
            v_mul_f32 v82, s69, v82
            v_cvt_pk_bf16_f32 v80, v81, v82
            v_lshlrev_b32 v{68+i}, 16, v80
            v_and_b32 v{69+i}, 0xffff0000, v80
            ''')
        a('v_mov_b32 v83, 0xf149f2ca')
        for i in range(4):
            a(f'v_cndmask_b32 v{68+i}, v83, v{68+i}, s[62:63]')
        a('''
        v_max3_f32 v80, v68, v69, v70
        v_max3_f32 v81, v71, v72, v73
        v_max3_f32 v82, v74, v75, v76
        v_max3_f32 v83, v77, v78, v79
        v_max3_f32 v80, v80, v81, v82
        v_max_f32 v80, v80, v83
        v_mov_b32 v81, v80
        s_nop 1
        v_permlane32_swap_b32 v80, v81
        v_max_f32 v80, v80, v81
        v_mov_b32 v81, v80
        s_nop 1
        v_permlane16_swap_b32 v80, v81
        v_max_f32 v80, v80, v81
        v_mul_f32 v80, s70, v80
        ''')
        for i in range(12):
            a(f'v_fma_f32 v{68+i}, v{68+i}, s70, -v80')
        for i in range(12):
            a(f'v_exp_f32 v{68+i}, v{68+i}')
        a('''
        s_nop 0
        v_add_f32 v80, v68, v69
        v_add_f32 v81, v70, v71
        v_add_f32 v82, v72, v73
        v_add_f32 v83, v74, v75
        v_add_f32 v80, v80, v76
        v_add_f32 v81, v81, v77
        v_add_f32 v82, v82, v78
        v_add_f32 v83, v83, v79
        v_add_f32 v80, v80, v81
        v_add_f32 v82, v82, v83
        v_add_f32 v80, v80, v82
        v_mov_b32 v81, v80
        s_nop 1
        v_permlane32_swap_b32 v80, v81
        v_add_f32 v80, v80, v81
        v_mov_b32 v81, v80
        s_nop 1
        v_permlane16_swap_b32 v80, v81
        v_add_f32 v80, v80, v81
        v_rcp_f32 v80, v80
        s_nop 0
        ''')
        for i in range(12):
            a(f'v_mul_f32 v{68+i}, v{68+i}, v80')
        a('''
        v_cvt_pk_bf16_f32 v84, v68, v69
        v_cvt_pk_bf16_f32 v85, v70, v71
        v_cvt_pk_bf16_f32 v86, v72, v73
        v_cvt_pk_bf16_f32 v87, v74, v75
        v_cvt_pk_bf16_f32 v88, v76, v77
        v_cvt_pk_bf16_f32 v89, v78, v79
        v_mov_b32 v90, 0
        v_mov_b32 v91, 0
        s_nop 1
        v_mfma_f32_16x16x32_bf16 v[92:95], v[18:21], v[84:87], 0
        v_mfma_f32_16x16x32_bf16 v[96:99], v[26:29], v[84:87], 0
        v_mfma_f32_16x16x32_bf16 v[92:95], v[22:25], v[88:91], v[92:95]
        v_mfma_f32_16x16x32_bf16 v[96:99], v[30:33], v[88:91], v[96:99]
        ''')
        a(f'''
        s_add_u32 s56, s56, {256*KB}
        buffer_load_dwordx4 v[20:23], v1, s[40:43], s56 offen
        buffer_load_dwordx4 v[28:31], v1, s[40:43], s56 offen offset:1024
        s_nop 6
        v_cvt_pk_bf16_f32 v64, v92, v93
        v_cvt_pk_bf16_f32 v65, v94, v95
        v_cvt_pk_bf16_f32 v66, v96, v97
        v_cvt_pk_bf16_f32 v67, v98, v99
        ds_write_b128 v2, v[64:67]
        s_waitcnt lgkmcnt(0)
        s_barrier
        v_add_u32 v80, {OFR}, v1
        ''')
        for ks in range(4):
            a(f'ds_read_b128 v[{100+ks*4}:{103+ks*4}], v80 offset:{ks*1024}')
        accs = [40, 44, 48, 52, 56, 60, 116, 120]
        for dtl in range(2):
            for ks in range(4):
                b = 64 + (dtl % 2) * 16 + ks * 4
                a(f'ds_read_b128 v[{b}:{b+3}], v4 offset:{(dtl*4+ks)*1024}')
        for dtl in range(8):
            a(f's_waitcnt lgkmcnt({4 if dtl < 7 else 0})')
            acc = f'v[{accs[dtl]}:{accs[dtl]+3}]'
            for ks in range(4):
                b = 64 + (dtl % 2) * 16 + ks * 4
                a(f'v_mfma_f32_16x16x32_bf16 {acc}, v[{b}:{b+3}], v[{100+ks*4}:{103+ks*4}], {"0" if ks == 0 else acc}')
            if dtl + 2 < 8:
                for ks in range(4):
                    b = 64 + (dtl % 2) * 16 + ks * 4
                    a(f'ds_read_b128 v[{b}:{b+3}], v4 offset:{((dtl+2)*4+ks)*1024}')
        a(f'''
        s_nop 7
        s_mov_b64 exec, s[60:61]
        ''')
        for dtl in range(8):
            a(f'buffer_store_dwordx4 v[{accs[dtl]}:{accs[dtl]+3}], v5, s[40:43], s53 offen offset:{dtl*512} {st}')
        a(f'''
        s_mov_b64 exec, -1
        s_add_u32 s50, s50, 1
        s_waitcnt vmcnt(0)
        s_barrier
        s_cmp_lg_u32 s3, 0
        s_cbranch_scc1 {L('adv')}
        s_mov_b64 exec, 1
        v_mov_b32 v34, s50
        v_mov_b32 v35, 0
        buffer_store_dword v34, v35, s[40:43], s64 offen {st}
        s_mov_b64 exec, -1
        ''')
        poll(66, 50, 'pa')
        a(f'''
        v_and_b32 v34, 31, v6
        v_lshlrev_b32 v34, 4, v34
        v_lshrrev_b32 v35, 5, v6
        v_lshl_add_u32 v34, v35, 14, v34
        ''')
        for p in range(16):
            a(f's_add_u32 s12, s54, {p*32*KB}')
            a(f'buffer_load_dwordx4 v[{64+p*4}:{67+p*4}], v34, s[40:43], s12 offen {ld}')
        a('s_waitcnt vmcnt(0)')
        for lvl in (8, 4, 2, 1):
            for p in range(lvl):
                for r in range(4):
                    a(f'v_add_f32 v{64+p*4+r}, v{64+p*4+r}, v{64+(p+lvl)*4+r}')
        for r in range(4):
            a(f'v_mov_b32 v{68+r}, v{64+r}')
        a('s_nop 1')
        for r in range(4):
            a(f'v_permlane32_swap_b32 v{64+r}, v{68+r}')
        for r in range(4):
            a(f'v_add_f32 v{64+r}, v{64+r}, v{68+r}')
        a(f'''
        v_cvt_pk_bf16_f32 v64, v64, v65
        v_cvt_pk_bf16_f32 v65, v66, v67
        v_lshrrev_b32 v34, 3, v6
        v_and_b32 v35, 7, v6             ; col
        v_lshl_add_u32 v34, v34, 4, v35
        v_lshlrev_b32 v34, 4, v34        ; (g*16+col)*16
        s_add_u32 s12, s52, s68
        s_mov_b64 exec, s[62:63]
        buffer_store_dwordx2 v[64:65], v34, s[40:43], s12 offen {st}
        s_waitcnt vmcnt(0)
        s_mov_b64 exec, 1
        v_mov_b32 v34, s50
        v_mov_b32 v35, 0
        buffer_store_dword v34, v35, s[40:43], s65 offen {st}
        s_mov_b64 exec, -1
        ''')
        a.label(L('adv'))
        a(f'''
        s_mov_b32 s12, s51
        s_mov_b32 s51, s52
        s_mov_b32 s52, s12
        s_xor_b32 s53, s53, {512*KB}
        s_xor_b32 s54, s54, {512*KB}
        s_add_u32 s57, s57, {128*KB}
        s_add_u32 s58, s58, {128*KB}
        s_branch {L('step')}
        ''')
    a.label('L_ch_done')
    a('s_endpgm')
    return kernel_desc(name, 256, 80, accum=256, nfv=512)
```

```python
from common import *

G1_WGS = 992
G1_LDS = 96 * KB
STAGE = 48 * KB


def gen_gemm1(a):
    name = 'gemm1_kernel'
    kernel_header(a, name)
    a(f'''
    s_cmp_ge_u32 s2, {G1_WGS}
    s_cbranch_scc1 L_g1_done
    s_load_dwordx2 s[8:9], s[0:1], 104
    v_lshrrev_b32 v2, 6, v0
    v_and_b32 v1, 63, v0
    v_lshlrev_b32 v1, 4, v1
    v_readfirstlane_b32 s3, v2       ; wave
    s_lshr_b32 s4, s2, 4             ; nb
    s_and_b32 s5, s2, 15             ; tb
    s_waitcnt lgkmcnt(0)
    ''')
    srd(a, 40, 8, WS_BYTES)
    a(f'''
    s_lshl_b32 s6, s4, 18            ; nb*256KB
    s_add_u32 s6, s6, {WQKV}
    s_lshl_b32 s7, s5, 17            ; tb*128KB
    s_add_u32 s7, s7, {XN - 16*16*KB}
    s_mul_i32 s10, s3, 6
    ''')
    for j in range(6):
        a(f'''
        s_add_u32 s11, s10, {j}
        s_cmp_lt_u32 s11, 16
        s_cselect_b32 s12, s6, s7
        s_lshl_b32 s13, s11, 14
        s_add_u32 s{20+j}, s12, s13
        s_lshl_b32 s{26+j}, s11, 11
        ''')
    a('''
    s_lshr_b32 s14, s3, 1            ; wn
    s_and_b32 s15, s3, 1             ; wt
    s_lshl_b32 s16, s14, 14
    s_lshl_b32 s17, s15, 13
    s_add_u32 s17, s17, 32768
    v_add_u32 v3, s16, v1
    v_add_u32 v4, s17, v1
    ''')
    for r in range(128, 256):
        a(f'v_mov_b32 v{r}, 0')

    def dma(stage):
        buf = (stage & 1) * STAGE
        for j in range(6):
            a(f'''
            s_add_u32 m0, s{26+j}, {buf}
            s_add_u32 s32, s{20+j}, {stage*2048}
            buffer_load_dwordx4 v1, s[40:43], s32 offen lds
            buffer_load_dwordx4 v1, s[40:43], s32 offen offset:1024 lds
            ''')

    def compute(stage, vtype):
        buf = (stage & 1) * STAGE
        for ks in range(2):
            base = 32 + ks * 48
            for n in range(8):
                a(f'ds_read_b128 v[{base+n*4}:{base+n*4+3}], v3 offset:{buf + n*2048 + ks*1024}')
            for t in range(4):
                a(f'ds_read_b128 v[{base+32+t*4}:{base+32+t*4+3}], v4 offset:{buf + t*2048 + ks*1024}')
        for ks in range(2):
            base = 32 + ks * 48
            a(f's_waitcnt lgkmcnt({12 if ks == 0 else 0})')
            for n in range(8):
                for t in range(4):
                    acc = 128 + (n * 4 + t) * 4
                    w = f'v[{base+n*4}:{base+n*4+3}]'
                    x = f'v[{base+32+t*4}:{base+32+t*4+3}]'
                    if vtype:
                        a(f'v_mfma_f32_16x16x32_bf16 v[{acc}:{acc+3}], {x}, {w}, v[{acc}:{acc+3}]')
                    else:
                        a(f'v_mfma_f32_16x16x32_bf16 v[{acc}:{acc+3}], {w}, {x}, v[{acc}:{acc+3}]')

    dma(0)
    a('''
    s_cmp_ge_u32 s4, 32
    s_cbranch_scc0 L_g1_main_n
    s_cmp_lt_u32 s4, 48
    s_cbranch_scc1 L_g1_main_v
    ''')
    for vt in (0, 1):
        a.label('L_g1_main_v' if vt else 'L_g1_main_n')
        for st in range(8):
            a('s_waitcnt vmcnt(0)')
            a('s_barrier')
            if st < 7:
                dma(st + 1)
            compute(st, vt)
        a('s_nop 7')
        a('s_nop 7')
        if vt:
            a(f'''
            s_lshl_b32 s33, s5, 2
            s_lshl_b32 s34, s15, 1
            s_add_u32 s33, s33, s34          ; seg0
            s_lshl_b32 s33, s33, 8           ; *256 et
            s_sub_u32 s34, s4, 32
            s_lshl_b32 s34, s34, 4
            s_add_u32 s33, s33, s34
            s_lshl_b32 s34, s14, 3
            s_add_u32 s33, s33, s34
            s_lshl_b32 s33, s33, 10
            s_add_u32 s33, s33, {VF}
            v_add_u32 v5, s33, v1
            v_add_u32 v6, {256*KB}, v5
            ''')
            k = 0
            for j in range(2):
                for n in range(8):
                    a0 = 128 + (n * 4 + 2 * j) * 4
                    a1 = a0 + 4
                    d = 32 + (k % 8) * 4
                    k += 1
                    a(f'''
                    v_cvt_pk_bf16_f32 v{d}, v{a0}, v{a0+1}
                    v_cvt_pk_bf16_f32 v{d+1}, v{a0+2}, v{a0+3}
                    v_cvt_pk_bf16_f32 v{d+2}, v{a1}, v{a1+1}
                    v_cvt_pk_bf16_f32 v{d+3}, v{a1+2}, v{a1+3}
                    ''')
                    if n == 4:
                        a(f'v_add_u32 v{5+j}, 4096, v{5+j}')
                    a(f'buffer_store_dwordx4 v[{d}:{d+3}], v{5+j}, s[40:43], 0 offen offset:{(n%4)*1024}')
            a('s_branch L_g1_done')
        else:
            a('''
            s_cmp_ge_u32 s4, 48
            s_cbranch_scc1 L_g1_epi_glu
            ''')
            a(f'''
            s_lshl_b32 s33, s5, 3
            s_lshl_b32 s34, s15, 2
            s_add_u32 s33, s33, s34          ; tt0
            s_lshl_b32 s33, s33, 7           ; *128
            s_and_b32 s34, s4, 15
            s_lshl_b32 s34, s34, 3
            s_add_u32 s33, s33, s34
            s_lshl_b32 s34, s14, 2
            s_add_u32 s33, s33, s34
            s_lshl_b32 s33, s33, 10
            s_add_u32 s33, s33, {QF}
            s_cmp_ge_u32 s4, 16
            s_cselect_b32 s34, {KF-QF}, 0
            s_add_u32 s33, s33, s34
            v_add_u32 v5, s33, v1
            ''')
            k = 0
            for t in range(4):
                for p in range(4):
                    a0 = 128 + ((2 * p) * 4 + t) * 4
                    a1 = 128 + ((2 * p + 1) * 4 + t) * 4
                    d = 32 + (k % 8) * 4
                    k += 1
                    a(f'''
                    v_cvt_pk_bf16_f32 v{d}, v{a0}, v{a0+1}
                    v_cvt_pk_bf16_f32 v{d+1}, v{a0+2}, v{a0+3}
                    v_cvt_pk_bf16_f32 v{d+2}, v{a1}, v{a1+1}
                    v_cvt_pk_bf16_f32 v{d+3}, v{a1+2}, v{a1+3}
                    buffer_store_dwordx4 v[{d}:{d+3}], v5, s[40:43], 0 offen offset:{p*1024}
                    ''')
                a(f'v_add_u32 v5, {128*KB}, v5')
            a('s_branch L_g1_done')
            a.label('L_g1_epi_glu')
            a(f'''
            s_lshl_b32 s33, s5, 3
            s_lshl_b32 s34, s15, 2
            s_add_u32 s33, s33, s34          ; tt0
            s_mul_i32 s33, s33, 56
            s_sub_u32 s34, s4, 48
            s_lshl_b32 s34, s34, 1
            s_add_u32 s34, s34, s14
            s_lshl_b32 s34, s34, 1
            s_add_u32 s33, s33, s34
            s_lshl_b32 s33, s33, 10
            s_add_u32 s33, s33, {HF}
            v_add_u32 v5, s33, v1
            s_mov_b32 s35, 0xbfb8aa3b        ; -log2(e)
            ''')
            k = 0
            for t in range(4):
                for p in range(2):
                    d = 32 + (k % 8) * 4
                    k += 1
                    for q in range(2):
                        n = 2 * p + q
                        ga = 128 + (n * 4 + t) * 4
                        ua = 128 + ((n + 4) * 4 + t) * 4
                        for hh in range(2):
                            g0, g1 = ga + 2 * hh, ga + 2 * hh + 1
                            u0, u1 = ua + 2 * hh, ua + 2 * hh + 1
                            a(f'''
                            v_cvt_pk_bf16_f32 v10, v{g0}, v{g1}
                            v_cvt_pk_bf16_f32 v11, v{u0}, v{u1}
                            v_lshlrev_b32 v12, 16, v10
                            v_and_b32 v13, 0xffff0000, v10
                            v_mul_f32 v12, s35, v12
                            v_mul_f32 v13, s35, v13
                            v_exp_f32 v12, v12
                            v_exp_f32 v13, v13
                            v_lshlrev_b32 v14, 16, v11
                            v_add_f32 v12, 1.0, v12
                            v_add_f32 v13, 1.0, v13
                            v_rcp_f32 v12, v12
                            v_rcp_f32 v13, v13
                            v_and_b32 v15, 0xffff0000, v11
                            v_cvt_pk_bf16_f32 v10, v12, v13
                            v_lshlrev_b32 v12, 16, v10
                            v_and_b32 v13, 0xffff0000, v10
                            v_mul_f32 v12, v12, v14
                            v_mul_f32 v13, v13, v15
                            v_cvt_pk_bf16_f32 v{d+2*q+hh}, v12, v13
                            ''')
                    a(f'buffer_store_dwordx4 v[{d}:{d+3}], v5, s[40:43], 0 offen offset:{p*1024}')
                a(f'v_add_u32 v5, {56*KB}, v5')
            a('s_branch L_g1_done')
    a.label('L_g1_done')
    a('s_endpgm')
    return kernel_desc(name, 256, 48)
```

```python
from common import *

G2_WGS = 256
G2_LDS = 128 * KB


def gen_gemm2(a):
    name = 'gemm2_kernel'
    kernel_header(a, name)
    a(f'''
    s_cmp_ge_u32 s2, {G2_WGS}
    s_cbranch_scc1 L_g2_done
    s_load_dwordx2 s[8:9], s[0:1], 104
    s_load_dwordx2 s[10:11], s[0:1], 0
    s_load_dwordx2 s[12:13], s[0:1], 88
    v_lshrrev_b32 v2, 6, v0
    v_and_b32 v6, 63, v0
    v_lshlrev_b32 v1, 4, v6
    v_readfirstlane_b32 s3, v2
    v_and_b32 v8, 15, v6
    v_lshrrev_b32 v9, 4, v6          ; g
    s_and_b32 s4, s2, 7              ; db
    s_lshr_b32 s5, s2, 3             ; tb
    s_waitcnt lgkmcnt(0)
    ''')
    srd(a, 40, 8, WS_BYTES)
    srd(a, 44, 10, 2048 * 512 * 2)
    srd(a, 48, 12, 2048 * 512 * 2)
    ACC_A, ACC_B = 128, 192

    def phase(tag, wbase, xbase, pitch, nk, acc):
        a(f'''
        s_mul_i32 s14, s4, {4*pitch}
        s_mul_i32 s15, s3, {nk*KB}
        s_add_u32 s14, s14, s15
        s_add_u32 s14, s14, {wbase}
        s_mul_i32 s16, s5, {4*pitch}
        s_add_u32 s16, s16, s15
        s_add_u32 s16, s16, {xbase}
        ''')
        for i in range(4):
            a(f's_add_u32 s{20+i}, s14, {i*pitch}')
            a(f's_add_u32 s{24+i}, s16, {i*pitch}')

        def loads(setn, koff):
            b = 32 + setn * 32
            for i in range(8):
                a(f'buffer_load_dwordx4 v[{b+i*4}:{b+i*4+3}], v1, s[40:43], s{20+i} offen offset:{koff}')

        def mf(setn, first):
            b = 32 + setn * 32
            for i in range(4):
                for j in range(4):
                    c = acc + (i * 4 + j) * 4
                    a(f'v_mfma_f32_16x16x32_bf16 v[{c}:{c+3}], v[{b+i*4}:{b+i*4+3}], v[{b+16+j*4}:{b+16+j*4+3}], v[{c}:{c+3}]')

        for r in range(64):
            a(f'v_mov_b32 v{acc+r}, 0')
        loads(0, 0)
        a(f's_mov_b32 s17, {nk//2}')
        a.label(f'L_g2_{tag}_loop')
        loads(1, 1024)
        a('s_waitcnt vmcnt(8)')
        mf(0, False)
        for i in range(8):
            a(f's_add_u32 s{20+i}, s{20+i}, 2048')
        loads(0, 0)
        a('s_waitcnt vmcnt(8)')
        mf(1, False)
        a(f'''
        s_sub_u32 s17, s17, 1
        s_cmp_lg_u32 s17, 0
        s_cbranch_scc1 L_g2_{tag}_loop
        s_waitcnt vmcnt(0)
        ''')

    phase('o', WO, OF, 128 * KB, 32, ACC_A)
    phase('h', WD, HF, 56 * KB, 14, ACC_B)
    a('''
    s_nop 7
    s_nop 1
    s_lshl_b32 s14, s3, 15
    v_add_u32 v4, s14, v1
    ''')
    for t in range(32):
        a(f'ds_write_b128 v4, v[{128+t*4}:{131+t*4}] offset:{t*1024}')
    a('''
    s_waitcnt lgkmcnt(0)
    s_barrier
    s_lshl_b32 s14, s3, 12           ; tiles 4w..4w+3
    v_add_u32 v4, s14, v1
    v_add_u32 v5, 0x10000, v4
    ''')
    a('''
    s_lshl_b32 s14, s5, 16
    s_lshl_b32 s15, s4, 7            ; db*64*2
    s_add_u32 s14, s14, s15
    s_lshl_b32 s15, s3, 5            ; w*16*2
    s_add_u32 s14, s14, s15
    v_lshlrev_b32 v7, 10, v8
    v_lshl_add_u32 v7, v9, 3, v7
    v_add_u32 v7, s14, v7
    ''')
    for j in range(4):
        a(f's_mov_b32 s15, {j*16*1024}')
        a(f'buffer_load_dwordx2 v[{16+j*2}:{17+j*2}], v7, s[44:47], s15 offen')
    for part in range(2):
        for j in range(4):
            for w in range(4):
                off = w * 32 * KB + part * 16 * KB + j * 1024
                addr = 'v4' if off < 65536 else 'v5'
                off %= 65536
                r = 32 + ((part * 4 + j) * 4 + w) * 4
                a(f'ds_read_b128 v[{r}:{r+3}], {addr} offset:{off}')
    a('s_waitcnt lgkmcnt(0)')
    for part in range(2):
        for j in range(4):
            r = 32 + ((part * 4 + j) * 4) * 4
            for e in range(4):
                a(f'v_add_f32 v{r+e}, v{r+e}, v{r+4+e}')
                a(f'v_add_f32 v{r+8+e}, v{r+8+e}, v{r+12+e}')
                a(f'v_add_f32 v{r+e}, v{r+e}, v{r+8+e}')
    a('s_waitcnt vmcnt(0)')
    for j in range(4):
        ra = 32 + (j * 4) * 4
        rb = 32 + ((4 + j) * 4) * 4
        for hh in range(2):
            a(f'''
            v_cvt_pk_bf16_f32 v10, v{ra+2*hh}, v{ra+2*hh+1}
            v_cvt_pk_bf16_f32 v11, v{rb+2*hh}, v{rb+2*hh+1}
            v_lshlrev_b32 v12, 16, v10
            v_and_b32 v13, 0xffff0000, v10
            v_lshlrev_b32 v14, 16, v{16+j*2+hh}
            v_and_b32 v15, 0xffff0000, v{16+j*2+hh}
            v_add_f32 v12, v12, v14
            v_add_f32 v13, v13, v15
            v_cvt_pk_bf16_f32 v10, v12, v13
            v_lshlrev_b32 v12, 16, v10
            v_and_b32 v13, 0xffff0000, v10
            v_lshlrev_b32 v14, 16, v11
            v_and_b32 v15, 0xffff0000, v11
            v_add_f32 v12, v12, v14
            v_add_f32 v13, v13, v15
            v_cvt_pk_bf16_f32 v{24+j*2+hh}, v12, v13
            ''')
        a(f's_mov_b32 s15, {j*16*1024}')
        a(f'buffer_store_dwordx2 v[{24+j*2}:{25+j*2}], v7, s[48:51], s15 offen')
    a.label('L_g2_done')
    a('s_endpgm')
    return kernel_desc(name, 256, 56)
```

```python
from common import *

PREP_WGS = 713


def gen_prep(a):
    name = 'prep_kernel'
    kernel_header(a, name)
    a(f'''
    s_cmp_ge_u32 s2, {PREP_WGS}
    s_cbranch_scc1 L_prep_done
    s_load_dwordx4 s[4:7], s[0:1], 0
    s_load_dwordx2 s[8:9], s[0:1], 104
    s_load_dwordx8 s[24:31], s[0:1], 16
    s_load_dwordx4 s[32:35], s[0:1], 64
    s_load_dwordx2 s[36:37], s[0:1], 80
    v_lshrrev_b32 v1, 6, v0
    v_and_b32 v2, 63, v0
    v_and_b32 v3, 15, v0
    v_readfirstlane_b32 s3, v1
    v_lshrrev_b32 v4, 4, v2
    v_lshlrev_b32 v5, 4, v2
    s_waitcnt lgkmcnt(0)
    ''')
    srd(a, 40, 8, WS_BYTES)
    a('''
    s_cmp_lt_u32 s2, 32
    s_cbranch_scc1 L_prep_ln
    s_cmp_eq_u32 s2, 712
    s_cbranch_scc1 L_prep_misc
    s_sub_u32 s20, s2, 32
    s_lshl_b32 s20, s20, 2
    s_add_u32 s20, s20, s3
    s_cmp_lt_u32 s20, 1536
    s_cbranch_scc1 L_prep_wqkv
    s_cmp_lt_u32 s20, 1984
    s_cbranch_scc1 L_prep_wgu
    s_cmp_lt_u32 s20, 2496
    s_cbranch_scc1 L_prep_wo
    ''')
    a(f'''
    s_sub_u32 s21, s20, 2496
    s_mul_i32 s22, s21, 9363
    s_lshr_b32 s22, s22, 16
    s_mul_i32 s23, s22, 7
    s_sub_u32 s23, s21, s23          ; kth
    s_mov_b32 s12, s36
    s_and_b32 s13, s37, 0xffff
    s_mov_b32 s14, {1792*512*2}
    s_mov_b32 s16, 1024
    s_lshl_b32 s17, s22, 5
    s_lshl_b32 s18, s23, 3           ; kt0
    s_mul_i32 s19, s22, 56
    s_add_u32 s19, s19, s18
    s_lshl_b32 s19, s19, 10
    s_add_u32 s19, s19, {WD}
    s_branch L_prep_wbody
    ''')
    a.label('L_prep_wo')
    a(f'''
    s_sub_u32 s21, s20, 1984
    s_lshr_b32 s22, s21, 4           ; dt
    s_and_b32 s23, s21, 15           ; kth
    s_mov_b32 s12, s30
    s_and_b32 s13, s31, 0xffff
    s_mov_b32 s14, {4096*512*2}
    s_mov_b32 s16, 1024
    s_lshl_b32 s17, s22, 5
    s_lshl_b32 s18, s23, 3
    s_lshl_b32 s19, s22, 7
    s_add_u32 s19, s19, s18
    s_lshl_b32 s19, s19, 10
    s_add_u32 s19, s19, {WO}
    s_branch L_prep_wbody
    ''')
    a.label('L_prep_wgu')
    a(f'''
    s_sub_u32 s21, s20, 1536
    s_lshr_b32 s22, s21, 1           ; nt 0..223
    s_and_b32 s23, s21, 1            ; kth
    s_lshr_b32 s44, s22, 3           ; G
    s_and_b32 s45, s22, 7            ; j
    s_cmp_lt_u32 s45, 4
    s_cselect_b32 s12, s32, s34
    s_cselect_b32 s13, s33, s35
    s_and_b32 s13, s13, 0xffff
    s_mov_b32 s14, {512*1792*2}
    s_mov_b32 s16, 3584
    s_and_b32 s45, s45, 3
    s_lshl_b32 s44, s44, 2
    s_add_u32 s44, s44, s45
    s_lshl_b32 s17, s44, 5
    s_lshl_b32 s18, s23, 3
    s_lshl_b32 s19, s22, 4
    s_add_u32 s19, s19, s18
    s_lshl_b32 s19, s19, 10
    s_add_u32 s19, s19, {WGU}
    s_branch L_prep_wbody
    ''')
    a.label('L_prep_wqkv')
    a(f'''
    s_lshr_b32 s22, s20, 1           ; nt 0..767
    s_and_b32 s23, s20, 1
    s_lshr_b32 s44, s22, 8           ; which
    s_cmp_eq_u32 s44, 0
    s_cselect_b32 s12, s24, s26
    s_cselect_b32 s13, s25, s27
    s_cmp_eq_u32 s44, 2
    s_cselect_b32 s12, s28, s12
    s_cselect_b32 s13, s29, s13
    s_and_b32 s13, s13, 0xffff
    s_mov_b32 s14, {512*4096*2}
    s_mov_b32 s16, 8192
    s_and_b32 s44, s22, 255
    s_lshl_b32 s17, s44, 5
    s_lshl_b32 s18, s23, 3
    s_lshl_b32 s19, s22, 4
    s_add_u32 s19, s19, s18
    s_lshl_b32 s19, s19, 10
    s_add_u32 s19, s19, {WQKV}
    ''')
    a.label('L_prep_wbody')
    a('''
    s_mov_b32 s15, 0x00020000
    v_lshlrev_b32 v6, 2, v4          ; 4g
    v_mul_lo_u32 v6, v6, s16
    v_lshlrev_b32 v7, 1, v3
    v_add3_u32 v6, v6, v7, s17       ; voff
    s_lshl_b32 s46, s18, 5
    s_mul_i32 s46, s46, s16
    ''')
    for kt in range(8):
        for i in range(8):
            r = kt * 32 + (i & 3) + 16 * (i >> 2)
            a(f's_mul_i32 s47, s16, {r}')
            a(f's_add_u32 s47, s47, s46')
            a(f'buffer_load_ushort v{80 + kt*8 + i}, v6, s[12:15], s47 offen')
    a('v_add_u32 v7, s19, v5')
    for kt in range(8):
        a(f's_waitcnt vmcnt({(7-kt)*8 + kt})')
        for j in range(4):
            a(f'v_lshl_or_b32 v{10+kt*4+j}, v{80+kt*8+2*j+1}, 16, v{80+kt*8+2*j}')
        a(f'buffer_store_dwordx4 v[{10+kt*4}:{13+kt*4}], v7, s[40:43], 0 offen offset:{kt*1024 % 4096}')
        if kt == 3:
            a('v_add_u32 v7, 4096, v7')
    a('s_branch L_prep_done')

    a.label('L_prep_misc')
    srd(a, 12, 6, 8192)
    a(f'''
    v_lshlrev_b32 v6, 10, v3         ; row*1024
    v_lshl_add_u32 v6, v4, 3, v6     ; + g*8
    s_lshl_b32 s20, s3, 8
    v_add_u32 v6, s20, v6
    ''')
    for kt in range(4):
        a(f'buffer_load_dwordx2 v[{10+kt*4}:{11+kt*4}], v6, s[12:15], 0 offen offset:{kt*64}')
        a(f'buffer_load_dwordx2 v[{12+kt*4}:{13+kt*4}], v6, s[12:15], 0 offen offset:{kt*64+32}')
    a(f'''
    s_lshl_b32 s20, s3, 12
    s_add_u32 s20, s20, {MEMF}
    v_add_u32 v7, s20, v5
    v_mov_b32 v8, 0
    v_lshlrev_b32 v9, 2, v0
    v_add_u32 v9, {FLAGS}, v9
    buffer_store_dword v8, v9, s[40:43], 0 offen
    s_waitcnt vmcnt(1)
    ''')
    for kt in range(4):
        a(f'buffer_store_dwordx4 v[{10+kt*4}:{13+kt*4}], v7, s[40:43], 0 offen offset:{kt*1024}')
    a('''
    v_mov_b32 v30, 0
    v_mov_b32 v31, 0
    v_mov_b32 v32, 0
    v_mov_b32 v33, 0
    v_add_u32 v7, 16384, v7
    ''')
    for kt in range(4):
        a(f'buffer_store_dwordx4 v[30:33], v7, s[40:43], 0 offen offset:{kt*1024}')
    a('s_branch L_prep_done')

    a.label('L_prep_ln')
    srd(a, 12, 4, 2048 * 512 * 2)
    a('''
    s_lshl_b32 s20, s2, 2
    s_add_u32 s20, s20, s3           ; tt
    s_lshl_b32 s21, s20, 14
    v_lshlrev_b32 v6, 10, v3
    v_lshl_add_u32 v6, v4, 3, v6
    v_add_u32 v6, s21, v6
    ''')
    for kt in range(16):
        a(f'buffer_load_dwordx2 v[{10+kt*4}:{11+kt*4}], v6, s[12:15], 0 offen offset:{kt*64}')
        a(f'buffer_load_dwordx2 v[{12+kt*4}:{13+kt*4}], v6, s[12:15], 0 offen offset:{kt*64+32}')
    a('''
    v_xor_b32 v7, 16, v2
    v_lshlrev_b32 v7, 2, v7
    v_xor_b32 v8, 32, v2
    v_lshlrev_b32 v8, 2, v8
    s_waitcnt vmcnt(0)
    ''')
    F = 80
    for j in range(64):
        a(f'v_lshlrev_b32 v{F+2*j}, 16, v{10+j}')
        a(f'v_and_b32 v{F+2*j+1}, 0xffff0000, v{10+j}')
    a(f'v_add_f32 v74, v{F}, v{F+1}')
    a(f'v_add_f32 v75, v{F+2}, v{F+3}')
    for j in range(4, 128, 2):
        a(f'v_add_f32 v74, v74, v{F+j}')
        a(f'v_add_f32 v75, v75, v{F+j+1}')
    a('v_add_f32 v74, v74, v75')

    def xreduce(reg):
        a(f'''
        ds_bpermute_b32 v76, v7, v{reg}
        s_waitcnt lgkmcnt(0)
        v_add_f32 v{reg}, v{reg}, v76
        ds_bpermute_b32 v76, v8, v{reg}
        s_waitcnt lgkmcnt(0)
        v_add_f32 v{reg}, v{reg}, v76
        ''')
    xreduce(74)
    a('v_mul_f32 v74, 0x3b000000, v74')
    a('v_mov_b32 v75, 0')
    a('v_mov_b32 v77, 0')
    for j in range(0, 128, 2):
        a(f'v_sub_f32 v78, v{F+j}, v74')
        a(f'v_sub_f32 v79, v{F+j+1}, v74')
        a(f'v_fmac_f32 v75, v78, v78')
        a(f'v_fmac_f32 v77, v79, v79')
    a('v_add_f32 v75, v75, v77')
    xreduce(75)
    a('''
    v_mul_f32 v75, 0x3b000000, v75   ; var
    v_cvt_pk_bf16_f32 v76, v74, v75
    v_lshlrev_b32 v74, 16, v76       ; m_bf
    v_and_b32 v75, 0xffff0000, v76   ; var_bf
    v_add_f32 v75, 0x3727c5ac, v75   ; + 1e-5
    v_cvt_pk_bf16_f32 v76, v75, v75
    v_lshlrev_b32 v75, 16, v76
    v_sqrt_f32 v75, v75
    s_nop 0
    v_cvt_pk_bf16_f32 v76, v75, v75
    v_lshlrev_b32 v75, 16, v76
    v_rcp_f32 v75, v75
    s_nop 0
    ''')
    for j in range(64):
        a(f'''
        v_sub_f32 v78, v{F+2*j}, v74
        v_sub_f32 v79, v{F+2*j+1}, v74
        v_cvt_pk_bf16_f32 v76, v78, v79
        v_lshlrev_b32 v78, 16, v76
        v_and_b32 v79, 0xffff0000, v76
        v_mul_f32 v78, v78, v75
        v_mul_f32 v79, v79, v75
        v_cvt_pk_bf16_f32 v{10+j}, v78, v79
        ''')
    a(f'''
    s_lshl_b32 s21, s20, 14
    v_add_u32 v7, s21, v5
    ''')
    for kt in range(16):
        a(f'buffer_store_dwordx4 v[{10+kt*4}:{13+kt*4}], v7, s[40:43], 0 offen offset:{(kt%4)*1024}')
        if kt % 4 == 3:
            a('v_add_u32 v7, 4096, v7')
    a.label('L_prep_done')
    a('s_endpgm')
    return kernel_desc(name, 208, 48)
```

```python
import sys, importlib
sys.path.insert(0, 'gen')
from common import *
import k_prep, k_gemm1

NAME = 'parallel_sum__memory_aug_recurrent_mem_tr__glu_gated_glu__prompt'

def build(stages):
    hdr = open(f'cdna_kernels/{NAME}.s.ref').read().split('\n')
    out = []
    for l in hdr:
        if l.startswith('; Override launch'):
            break
        out.append(l)
    a = Asm()
    descs = []
    launches = []
    if 'prep' in stages:
        descs.append(k_prep.gen_prep(a))
        launches.append(f'; @launch kernel=prep_kernel grid=({k_prep.PREP_WGS},1,1) block=(256,1,1) lds=0')
    if 'gemm1' in stages:
        descs.append(k_gemm1.gen_gemm1(a))
        launches.append(f'; @launch kernel=gemm1_kernel grid=({k_gemm1.G1_WGS},1,1) block=(256,1,1) lds={k_gemm1.G1_LDS}')
    if 'chain' in stages:
        import k_chain
        descs.append(k_chain.gen_chain(a))
        launches.append(f'; @launch kernel=chain_kernel grid=({k_chain.CH_WGS},1,1) block=(256,1,1) lds={k_chain.CH_LDS}')
    if 'attn' in stages:
        import k_attn
        descs.append(k_attn.gen_attn(a))
        launches.append(f'; @launch kernel=attn_kernel grid=({k_attn.AT_WGS},1,1) block=(256,1,1) lds=0')
    if 'gemm2' in stages:
        import k_gemm2
        descs.append(k_gemm2.gen_gemm2(a))
        launches.append(f'; @launch kernel=gemm2_kernel grid=({k_gemm2.G2_WGS},1,1) block=(256,1,1) lds={k_gemm2.G2_LDS}')
    txt = '\n'.join(out + launches) + '\n.amdgcn_target "amdgcn-amd-amdhsa--gfx950"\n' + a.text() + ''.join(descs)
    return txt

if __name__ == '__main__':
    stages = sys.argv[1].split(',') if len(sys.argv) > 1 else ['prep', 'gemm1', 'chain', 'attn', 'gemm2']
    dst = sys.argv[2] if len(sys.argv) > 2 else f'cdna_kernels/{NAME}.s'
    open(dst, 'w').write(build(stages))
    print('wrote', dst)
```

```python
from common import *
import os

CH_WGS = 256
SCR = 128 * KB
OFR = 134 * KB
MEML = 136 * KB
ROLE = 144 * KB
CH_LDS = 145 * KB
SPIN = 1 << 20
STAMP = int(os.environ.get('STAMP', '0'))


class LdsQ:
    def __init__(self, a):
        self.a = a
        self.order = []
        self.done = -1

    def issue(self, tag, text):
        self.a(text)
        self.order.append(tag)

    def need(self, tag):
        i = self.order.index(tag)
        if i <= self.done:
            return
        n = len(self.order) - 1 - i
        self.a(f's_waitcnt lgkmcnt({min(n, 15)})')
        self.done = i


def gen_chain(a):
    def stamp(i):
        if STAMP:
            a(f'''
            s_memtime s[96:97]
            s_waitcnt lgkmcnt(0)
            s_mov_b32 s{80+i}, s96
            ''')

    name = 'chain_kernel'
    kernel_header(a, name)
    a(f'''
    s_cmp_ge_u32 s2, {CH_WGS}
    s_cbranch_scc1 L_ch_done
    s_load_dwordx2 s[8:9], s[0:1], 104
    s_load_dwordx2 s[10:11], s[0:1], 96
    v_lshrrev_b32 v2, 6, v0
    v_and_b32 v6, 63, v0             ; lane
    v_lshlrev_b32 v1, 4, v6          ; lane*16
    v_readfirstlane_b32 s3, v2       ; wave
    v_lshlrev_b32 v3, 3, v6          ; lane*8
    s_waitcnt lgkmcnt(0)
    ''')
    srd(a, 40, 8, WS_BYTES)
    srd(a, 44, 10, 256)
    a(f'''
    s_cmp_lg_u32 s3, 0
    s_cbranch_scc1 L_ch_role_wait
    s_getreg_b32 s12, hwreg(HW_REG_XCC_ID)
    s_and_b32 s12, s12, 7
    s_mov_b64 exec, 1
    v_mov_b32 v10, 1
    s_lshl_b32 s13, s12, 2
    v_mov_b32 v11, s13
    v_mov_b32 v12, 1
    v_mov_b32 v13, 32
    v_mov_b32 v16, 36
    buffer_atomic_add v10, v11, s[44:47], 0 offen sc0 sc1
    buffer_atomic_add v12, v13, s[44:47], 0 offen sc0 sc1
    s_waitcnt vmcnt(0)
    v_readfirstlane_b32 s13, v10
    v_readfirstlane_b32 s14, v12
    s_add_u32 s15, s12, 1
    s_cmp_lg_u32 s13, 31
    s_cbranch_scc1 L_ch_role_poll
    v_mov_b32 v14, s15
    v_mov_b32 v15, 0
    buffer_atomic_cmpswap v[14:15], v16, s[44:47], 0 offen sc1
    s_waitcnt vmcnt(0)
    ''')
    a.label('L_ch_role_poll')
    a(f's_mov_b32 s19, {SPIN}')
    a.label('L_ch_role_loop')
    a(f'''
    buffer_load_dwordx2 v[18:19], v13, s[44:47], 0 offen sc0 sc1
    s_waitcnt vmcnt(0)
    v_readfirstlane_b32 s16, v18     ; count
    v_readfirstlane_b32 s17, v19     ; winner
    s_cmp_lg_u32 s17, 0
    s_cbranch_scc1 L_ch_role_dec
    s_sub_u32 s19, s19, 1
    s_cmp_eq_u32 s19, 0
    s_cbranch_scc1 L_ch_role_dec
    s_cmp_lt_u32 s16, {CH_WGS}
    s_cbranch_scc1 L_ch_role_loop
    v_mov_b32 v14, 100
    v_mov_b32 v15, 0
    buffer_atomic_cmpswap v[14:15], v16, s[44:47], 0 offen sc1
    s_waitcnt vmcnt(0)
    s_branch L_ch_role_loop
    ''')
    a.label('L_ch_role_dec')
    a(f'''
    s_mov_b32 s18, 0xffff
    s_cmp_eq_u32 s17, 100
    s_cbranch_scc0 L_ch_role_fast
    s_or_b32 s20, s14, 0x100
    s_cmp_lt_u32 s14, 32
    s_cselect_b32 s18, s20, s18
    s_branch L_ch_role_wr
    ''')
    a.label('L_ch_role_fast')
    a('''
    s_cmp_lg_u32 s17, s15
    s_cbranch_scc1 L_ch_role_wr
    s_cmp_lt_u32 s13, 32
    s_cselect_b32 s18, s13, s18
    ''')
    a.label('L_ch_role_wr')
    a(f'''
    v_mov_b32 v10, s18
    v_mov_b32 v11, {ROLE}
    ds_write_b32 v11, v10
    s_waitcnt lgkmcnt(0)
    s_mov_b64 exec, -1
    ''')
    a.label('L_ch_role_wait')
    a(f'''
    s_barrier
    v_mov_b32 v11, {ROLE}
    ds_read_b32 v10, v11
    s_waitcnt lgkmcnt(0)
    v_readfirstlane_b32 s18, v10
    s_cmp_eq_u32 s18, 0xffff
    s_cbranch_scc1 L_ch_done
    s_and_b32 s4, s18, 0xff          ; h
    s_lshr_b32 s5, s18, 8            ; mode
    ''')
    a(f'''
    s_lshl_b32 s6, s4, 3
    s_lshl_b32 s7, s3, 1
    s_add_u32 s6, s6, s7             ; h*8+2w
    s_lshl_b32 s6, s6, 14
    s_add_u32 s6, s6, {WQKV}
    ''')
    for ti in range(4):
        which, sub = ti // 2, ti % 2
        for q4 in range(4):
            a(f's_add_u32 s7, s6, {which*256*16*KB + sub*16*KB + q4*4*KB}')
            for j in range(4):
                kt = q4 * 4 + j
                a(f'buffer_load_dwordx4 a[{ti*64+kt*4}:{ti*64+kt*4+3}], v1, s[40:43], s7 offen offset:{j*1024}')
    a(f'''
    s_lshl_b32 s13, s3, 15
    ''')
    for c in range(8):
        a(f'''
        s_add_u32 m0, s13, {c*4096}
        s_add_u32 s7, s6, {2*256*16*KB + c*4*KB}
        ''')
        for j in range(4):
            a(f'buffer_load_dwordx4 v1, s[40:43], s7 offen offset:{j*1024} lds')
    a(f'''
    s_lshl_b32 s6, s3, 20
    s_lshl_b32 s7, s4, 12            ; h*4KB
    s_add_u32 s6, s6, s7
    s_add_u32 s6, s6, {WO}
    s_lshl_b32 s7, s3, 15
    ''')
    for dtl in range(8):
        a(f's_add_u32 s12, s6, {dtl*128*KB}')
        for ks in range(4):
            r = 128 + (dtl * 4 + ks) * 4
            a(f'buffer_load_dwordx4 v[{r}:{r+3}], v1, s[40:43], s12 offen offset:{ks*1024}')
    a(f'''
    v_add_u32 v4, s7, v1
    v_and_b32 v34, 15, v6            ; col
    v_lshrrev_b32 v35, 4, v6         ; g
    v_and_b32 v36, 7, v6             ; col&7
    v_lshl_add_u32 v5, v35, 3, v36
    v_lshlrev_b32 v5, 4, v5
    v_cmp_gt_u32 s[60:61], 8, v34
    v_cmp_gt_u32 s[62:63], 32, v6    ; lanes < 32 (g<2)
    v_cmp_gt_u32 s[76:77], 8, v6     ; lanes < 8
    s_mul_i32 s12, s3, 1536
    s_add_u32 s12, s12, {SCR}
    v_add_u32 v8, s12, v5
    v_lshrrev_b32 v37, 3, v34        ; col>>3
    v_add_u32 v7, s3, v37
    v_add_u32 v7, 1, v7
    v_and_b32 v7, 3, v7              ; (w+1+hi)&3
    v_mul_u32_u24 v7, 1536, v7
    v_add3_u32 v7, v7, v5, 0
    v_add_u32 v7, {SCR}, v7
    v_add_u32 v0, s3, v37
    v_add_u32 v0, 3, v0
    v_and_b32 v0, 3, v0              ; (w+3+hi)&3
    v_mul_u32_u24 v0, 1536, v0
    v_add3_u32 v0, v0, v5, 0
    v_add_u32 v0, {SCR}, v0
    v_add_u32 v9, {OFR}, v5
    s_lshl_b32 s12, s3, 9
    v_add_u32 v2, s12, v9
    s_lshl_b32 s12, s3, 11
    s_add_u32 s12, s12, {MEML}
    v_add_u32 v38, s12, v1
    v_lshrrev_b32 v37, 3, v6
    v_lshlrev_b32 v39, 14, v37
    v_lshl_add_u32 v39, v36, 4, v39
    s_lshl_b32 s12, s3, 7
    v_add_u32 v39, s12, v39
    v_mov_b32 v24, 0
    v_mov_b32 v25, 0
    v_mov_b32 v32, 0
    v_mov_b32 v33, 0
    s_mov_b32 s50, 0
    s_lshl_b32 s12, s3, 11
    s_add_u32 s51, s12, {MEMF}
    s_add_u32 s52, s51, 8192         ; next
    s_add_u32 s59, s51, 16384
    s_lshl_b32 s53, s4, 14
    s_lshl_b32 s12, s3, 12
    s_add_u32 s53, s53, s12
    s_add_u32 s53, s53, {PART}
    s_lshl_b32 s54, s4, 9
    s_add_u32 s54, s54, {PART}
    s_lshl_b32 s12, s4, 2
    s_add_u32 s12, s12, s3
    s_lshl_b32 s12, s12, 10          ; (h*4+w) KB
    s_add_u32 s55, s12, {KF}
    s_add_u32 s57, s12, {KMF}
    s_lshl_b32 s12, s4, 3
    s_lshl_b32 s13, s3, 1
    s_add_u32 s12, s12, s13          ; h*8+2w
    s_lshl_b32 s13, s12, 10
    s_add_u32 s56, s13, {VF}
    s_lshl_b32 s13, s12, 9
    s_add_u32 s58, s13, {VMF}
    s_lshr_b32 s12, s4, 1
    s_lshl_b32 s12, s12, 9
    s_and_b32 s13, s4, 1
    s_lshl_b32 s13, s13, 3
    s_add_u32 s68, s12, s13
    s_lshl_b32 s12, s3, 7
    s_add_u32 s68, s68, s12
    s_lshl_b32 s12, s3, 11
    s_sub_u32 s68, s68, s12
    s_mov_b32 s69, 0x3e0293ee        ; scale*log2e
    ''')
    a(f'''
    s_add_u32 s12, s55, {128*KB}
    buffer_load_dwordx4 v[10:13], v1, s[40:43], s55 offen
    buffer_load_dwordx4 v[14:17], v1, s[40:43], s12 offen
    buffer_load_dwordx4 v[20:23], v1, s[40:43], s56 offen
    buffer_load_dwordx4 v[28:31], v1, s[40:43], s56 offen offset:1024
    s_waitcnt vmcnt(0)
    s_barrier
    s_cmp_eq_u32 s5, 0
    s_cbranch_scc0 L_ch_slow_step
    ''')

    for mode in ('fast', 'slow'):
        ld = 'sc1' if mode == 'fast' else 'sc0 sc1'
        st = '' if mode == 'fast' else 'sc0 sc1'
        L = lambda x: f'L_ch_{mode}_{x}'

        a.label(L('step'))
        stamp(0)
        a(f's_mov_b32 s19, {SPIN}')
        a.label(L('pm_loop'))
        a(f'''
        buffer_load_dwordx4 v[80:83], v1, s[40:43], s51 offen {ld}
        buffer_load_dwordx4 v[84:87], v1, s[40:43], s51 offen offset:1024 {ld}
        s_waitcnt vmcnt(0)
        v_max3_u32 v88, v80, v81, v82
        v_max3_u32 v89, v83, v84, v85
        v_max3_u32 v88, v88, v86, v87
        v_max_u32 v88, v88, v89
        v_cmp_eq_u32 vcc, -1, v88
        s_cbranch_vccz {L('pm_ok')}
        s_sub_u32 s19, s19, 1
        s_cmp_lg_u32 s19, 0
        s_cbranch_scc1 {L('pm_loop')}
        s_branch L_ch_done
        ''')
        a.label(L('pm_ok'))
        stamp(1)
        a(f'''
        ds_write_b128 v38, v[80:83]
        ds_write_b128 v38, v[84:87] offset:1024
        s_waitcnt lgkmcnt(0)
        s_barrier
        ''')
        q = LdsQ(a)

        def rd_mem(kt):
            b = 96 + (kt % 8) * 4
            q.issue(('m', kt), f'ds_read_b128 v[{b}:{b+3}], v9 offset:{MEML - OFR + kt*512}')

        def rd_wv(kt):
            for t in range(2):
                b = 64 + ((kt % 2) * 2 + t) * 4
                q.issue(('w', kt, t), f'ds_read_b128 v[{b}:{b+3}], v4 offset:{(t*16+kt)*1024}')

        def mf_v(kt):
            m = 96 + (kt % 8) * 4
            for t in range(2):
                q.need(('w', kt, t))
                b = 64 + ((kt % 2) * 2 + t) * 4
                acc = f'v[{56+t*4}:{59+t*4}]'
                a(f'v_mfma_f32_16x16x32_bf16 {acc}, v[{m}:{m+3}], v[{b}:{b+3}], {"0" if kt == 0 else acc}')

        rd_mem(0)
        rd_wv(0)
        rd_mem(1)
        rd_wv(1)
        for kt in range(2, 8):
            rd_mem(kt)
        for kt in range(16):
            q.need(('m', kt))
            if kt == 0:
                stamp(2)
            m = 96 + (kt % 8) * 4
            for ti in range(4):
                acc = f'v[{40+ti*4}:{43+ti*4}]'
                a(f'v_mfma_f32_16x16x32_bf16 {acc}, a[{ti*64+kt*4}:{ti*64+kt*4+3}], v[{m}:{m+3}], {"0" if kt == 0 else acc}')
            if kt < 8:
                mf_v(kt)
                rd_mem(kt + 8)
                rd_wv(kt + 2)
        stamp(3)
        a('''
        s_nop 7
        v_cvt_pk_bf16_f32 v34, v40, v41
        v_cvt_pk_bf16_f32 v35, v42, v43
        v_cvt_pk_bf16_f32 v36, v44, v45
        v_cvt_pk_bf16_f32 v37, v46, v47
        v_cvt_pk_bf16_f32 v40, v48, v49
        v_cvt_pk_bf16_f32 v41, v50, v51
        v_cvt_pk_bf16_f32 v42, v52, v53
        v_cvt_pk_bf16_f32 v43, v54, v55
        s_nop 1
        v_mfma_f32_16x16x32_bf16 v[44:47], v[40:43], v[34:37], 0
        v_mfma_f32_16x16x32_bf16 v[48:51], v[10:13], v[34:37], 0
        v_mfma_f32_16x16x32_bf16 v[52:55], v[14:17], v[34:37], 0
        buffer_store_dwordx4 v[40:43], v1, s[40:43], s57 offen
        ''')
        mf_v(8)
        rd_wv(10)
        a('s_nop 3')
        q.issue('t0', 'ds_write_b128 v8, v[44:47]')
        q.issue('t1', 'ds_write_b128 v8, v[48:51] offset:512')
        q.issue('t2', 'ds_write_b128 v8, v[52:55] offset:1024')
        mf_v(9)
        rd_wv(11)
        q.need('t2')
        a('s_barrier')
        stamp(4)
        for t in range(3):
            q.issue(('r1', t), f'ds_read_b128 v[{80+t*4}:{83+t*4}], v7 offset:{t*512}')
        for t in range(3):
            q.issue(('r2', t), f'ds_read_b128 v[{44+t*4}:{47+t*4}], v0 offset:{t*512}')
        a(f'''
        s_add_u32 s55, s55, {256*KB}
        s_add_u32 s12, s55, {128*KB}
        buffer_load_dwordx4 v[10:13], v1, s[40:43], s55 offen
        buffer_load_dwordx4 v[14:17], v1, s[40:43], s12 offen
        v_mov_b32 v95, 0xf149f2ca
        ''')
        mf_v(10)
        rd_wv(12)
        q.need(('r2', 2))
        for i in range(12):
            a(f'v_add_f32 v{44+i}, v{44+i}, v{80+i}')
        mf_v(11)
        rd_wv(13)
        for i in range(12):
            a(f'v_add_f32_dpp v{44+i}, v{44+i}, v{44+i} row_ror:8 row_mask:0xf bank_mask:0xf')
        for i in range(4):
            a(f'v_cndmask_b32 v{44+i}, v95, v{44+i}, s[62:63]')
        mf_v(12)
        rd_wv(14)
        a('''
        v_max3_f32 v92, v48, v49, v50
        v_max3_f32 v93, v51, v52, v53
        v_max3_f32 v94, v54, v55, v44
        v_max3_f32 v92, v92, v45, v46
        v_max3_f32 v93, v93, v94, v47
        v_max_f32 v92, v92, v93
        v_mov_b32 v93, v92
        ''')
        mf_v(13)
        rd_wv(15)
        a('''
        v_permlane32_swap_b32 v92, v93
        v_max_f32 v92, v92, v93
        v_mov_b32 v93, v92
        s_nop 1
        v_permlane16_swap_b32 v92, v93
        v_max_f32 v92, v92, v93
        v_mul_f32 v92, s69, v92
        ''')
        for i in range(12):
            a(f'v_fma_f32 v{44+i}, v{44+i}, s69, -v92')
        mf_v(14)
        for i in range(12):
            a(f'v_exp_f32 v{44+i}, v{44+i}')
            if i == 5:
                mf_v(15)
        a('''
        v_mov_b32 v86, 0
        v_mov_b32 v87, 0
        v_cvt_pk_bf16_f32 v80, v44, v45
        v_cvt_pk_bf16_f32 v81, v46, v47
        v_cvt_pk_bf16_f32 v82, v48, v49
        v_cvt_pk_bf16_f32 v83, v50, v51
        v_cvt_pk_bf16_f32 v84, v52, v53
        v_cvt_pk_bf16_f32 v85, v54, v55
        v_add_f32 v92, v44, v45
        v_add_f32 v93, v46, v47
        v_add_f32 v94, v48, v49
        v_add_f32 v95, v50, v51
        v_cvt_pk_bf16_f32 v18, v56, v57
        v_cvt_pk_bf16_f32 v19, v58, v59
        v_cvt_pk_bf16_f32 v26, v60, v61
        v_cvt_pk_bf16_f32 v27, v62, v63
        v_add_f32 v92, v92, v52
        v_add_f32 v93, v93, v53
        v_mfma_f32_16x16x32_bf16 v[64:67], v[18:21], v[80:83], 0
        v_mfma_f32_16x16x32_bf16 v[68:71], v[26:29], v[80:83], 0
        v_mfma_f32_16x16x32_bf16 v[64:67], v[22:25], v[84:87], v[64:67]
        v_mfma_f32_16x16x32_bf16 v[68:71], v[30:33], v[84:87], v[68:71]
        buffer_store_dwordx2 v[18:19], v3, s[40:43], s58 offen
        buffer_store_dwordx2 v[26:27], v3, s[40:43], s58 offen offset:512
        s_cmp_eq_u32 s50, 63
        s_cbranch_scc1 L_ch_done
        v_add_f32 v94, v94, v54
        v_add_f32 v95, v95, v55
        v_add_f32 v92, v92, v93
        v_add_f32 v94, v94, v95
        v_add_f32 v92, v92, v94
        v_mov_b32 v93, v92
        s_nop 1
        v_permlane32_swap_b32 v92, v93
        v_add_f32 v92, v92, v93
        v_mov_b32 v93, v92
        s_nop 1
        v_permlane16_swap_b32 v92, v93
        v_add_f32 v92, v92, v93
        v_rcp_f32 v92, v92
        ''')
        a(f'''
        s_add_u32 s56, s56, {256*KB}
        buffer_load_dwordx4 v[20:23], v1, s[40:43], s56 offen
        buffer_load_dwordx4 v[28:31], v1, s[40:43], s56 offen offset:1024
        ''')
        for i in range(8):
            a(f'v_mul_f32 v{64+i}, v{64+i}, v92')
        a('''
        v_cvt_pk_bf16_f32 v72, v64, v65
        v_cvt_pk_bf16_f32 v73, v66, v67
        v_cvt_pk_bf16_f32 v74, v68, v69
        v_cvt_pk_bf16_f32 v75, v70, v71
        ds_write_b128 v2, v[72:75]
        s_waitcnt lgkmcnt(0)
        s_barrier
        ''')
        stamp(5)
        for ks in range(4):
            a(f'ds_read_b128 v[{96+ks*4}:{99+ks*4}], v9 offset:{ks*512}')
        a(f'''
        v_mov_b32 v120, -1
        v_mov_b32 v121, -1
        v_lshlrev_b32 v122, 4, v6
        s_add_u32 s12, s59, s68
        s_mov_b64 exec, s[76:77]
        buffer_store_dwordx2 v[120:121], v122, s[40:43], s12 offen {st}
        s_mov_b64 exec, -1
        ''')
        accs = [40, 44, 48, 52, 56, 60, 112, 116]

        def pstore(dtl):
            a(f'''
            s_mov_b64 exec, s[60:61]
            buffer_store_dwordx4 v[{accs[dtl]}:{accs[dtl]+3}], v5, s[40:43], s53 offen offset:{dtl*512} {st}
            s_mov_b64 exec, -1
            ''')
        for ks in range(4):
            a(f's_waitcnt lgkmcnt({3-ks})')
            for dtl in range(8):
                acc = f'v[{accs[dtl]}:{accs[dtl]+3}]'
                b = 128 + (dtl * 4 + ks) * 4
                a(f'v_mfma_f32_16x16x32_bf16 {acc}, v[{b}:{b+3}], v[{96+ks*4}:{99+ks*4}], {"0" if ks == 0 else acc}')
        for dtl in range(8):
            if dtl == 7:
                a('s_nop 1')
            pstore(dtl)
        stamp(6)
        a(f'''
        s_add_u32 s50, s50, 1
        s_add_u32 s12, s54, {128*KB}
        s_add_u32 s13, s54, {256*KB}
        s_add_u32 s14, s54, {384*KB}
        s_mov_b32 s19, {SPIN}
        ''')
        a.label(L('pr_loop'))
        a(f'''
        buffer_load_dwordx4 v[64:67], v39, s[40:43], s54 offen {ld}
        buffer_load_dwordx4 v[68:71], v39, s[40:43], s12 offen {ld}
        buffer_load_dwordx4 v[72:75], v39, s[40:43], s13 offen {ld}
        buffer_load_dwordx4 v[76:79], v39, s[40:43], s14 offen {ld}
        s_waitcnt vmcnt(0)
        v_max3_u32 v80, v64, v65, v66
        v_max3_u32 v81, v67, v68, v69
        v_max3_u32 v82, v70, v71, v72
        v_max3_u32 v83, v73, v74, v75
        v_max3_u32 v80, v80, v76, v77
        v_max3_u32 v81, v81, v78, v79
        v_max3_u32 v80, v80, v82, v83
        v_max_u32 v80, v80, v81
        v_cmp_eq_u32 vcc, -1, v80
        s_cbranch_vccz {L('pr_ok')}
        s_sub_u32 s19, s19, 1
        s_cmp_lg_u32 s19, 0
        s_cbranch_scc1 {L('pr_loop')}
        s_branch L_ch_done
        ''')
        a.label(L('pr_ok'))
        stamp(7)
        for r in range(4):
            a(f'v_add_f32 v{64+r}, v{64+r}, v{68+r}')
            a(f'v_add_f32 v{72+r}, v{72+r}, v{76+r}')
        for r in range(4):
            a(f'v_add_f32 v{64+r}, v{64+r}, v{72+r}')
        a('s_nop 1')
        for r in range(4):
            a(f'v_add_f32_dpp v{64+r}, v{64+r}, v{64+r} row_ror:8 row_mask:0xf bank_mask:0xf')
        for r in range(4):
            a(f'v_mov_b32 v{68+r}, v{64+r}')
        a('s_nop 0')
        for r in range(4):
            a(f'v_permlane32_swap_b32 v{64+r}, v{68+r}')
        for r in range(4):
            a(f'v_add_f32 v{64+r}, v{64+r}, v{68+r}')
        for r in range(4):
            a(f'v_mov_b32 v{68+r}, v{64+r}')
        a('s_nop 0')
        for r in range(4):
            a(f'v_permlane16_swap_b32 v{64+r}, v{68+r}')
        for r in range(4):
            a(f'v_add_f32 v{64+r}, v{64+r}, v{68+r}')
        a(f'''
        v_cvt_pk_bf16_f32 v64, v64, v65
        v_cvt_pk_bf16_f32 v65, v66, v67
        v_lshlrev_b32 v66, 4, v6
        s_add_u32 s15, s52, s68
        s_mov_b64 exec, s[76:77]
        buffer_store_dwordx2 v[64:65], v66, s[40:43], s15 offen {st}
        s_mov_b64 exec, -1
        v_mov_b32 v68, -1
        v_mov_b32 v69, -1
        v_mov_b32 v70, -1
        v_mov_b32 v71, -1
        buffer_store_dwordx4 v[68:71], v39, s[40:43], s54 offen {st}
        buffer_store_dwordx4 v[68:71], v39, s[40:43], s12 offen {st}
        buffer_store_dwordx4 v[68:71], v39, s[40:43], s13 offen {st}
        buffer_store_dwordx4 v[68:71], v39, s[40:43], s14 offen {st}
        ''')
        stamp(8)
        if STAMP:
            a(f'''
            s_cmp_lg_u32 s3, 0
            s_cbranch_scc1 {L('nost')}
            s_lshl_b32 s12, s50, 6
            s_lshl_b32 s13, s4, 12
            s_add_u32 s12, s12, s13
            s_add_u32 s12, s12, {FLAGS + 65536}
            v_mov_b32 v35, 0
            ''')
            for i in range(9):
                a(f'v_mov_b32 v34, s{80+i}')
                a(f'buffer_store_dword v34, v35, s[40:43], s12 offen offset:{i*4}')
            a.label(L('nost'))
        a(f'''
        s_mov_b32 s12, s51
        s_mov_b32 s51, s52
        s_mov_b32 s52, s59
        s_mov_b32 s59, s12
        s_xor_b32 s53, s53, {512*KB}
        s_xor_b32 s54, s54, {512*KB}
        s_add_u32 s57, s57, {128*KB}
        s_add_u32 s58, s58, {128*KB}
        s_branch {L('step')}
        ''')
    a.label('L_ch_done')
    a('s_endpgm')
    return kernel_desc(name, 256, 100, accum=256, nfv=512)
```

```python
from common import *

PREP_WGS = 713


def gen_prep(a):
    name = 'prep_kernel'
    kernel_header(a, name)
    a(f'''
    s_cmp_ge_u32 s2, {PREP_WGS}
    s_cbranch_scc1 L_prep_done
    s_load_dwordx4 s[4:7], s[0:1], 0
    s_load_dwordx2 s[8:9], s[0:1], 104
    s_load_dwordx8 s[24:31], s[0:1], 16
    s_load_dwordx4 s[32:35], s[0:1], 64
    s_load_dwordx2 s[36:37], s[0:1], 80
    v_lshrrev_b32 v1, 6, v0
    v_and_b32 v2, 63, v0
    v_and_b32 v3, 15, v0
    v_readfirstlane_b32 s3, v1
    v_lshrrev_b32 v4, 4, v2
    v_lshlrev_b32 v5, 4, v2
    s_waitcnt lgkmcnt(0)
    ''')
    srd(a, 40, 8, WS_BYTES)
    a('''
    s_cmp_lt_u32 s2, 32
    s_cbranch_scc1 L_prep_ln
    s_cmp_eq_u32 s2, 712
    s_cbranch_scc1 L_prep_misc
    s_sub_u32 s20, s2, 32
    s_lshl_b32 s20, s20, 2
    s_add_u32 s20, s20, s3
    s_cmp_lt_u32 s20, 1536
    s_cbranch_scc1 L_prep_wqkv
    s_cmp_lt_u32 s20, 1984
    s_cbranch_scc1 L_prep_wgu
    s_cmp_lt_u32 s20, 2496
    s_cbranch_scc1 L_prep_wo
    ''')
    a(f'''
    s_sub_u32 s21, s20, 2496
    s_mul_i32 s22, s21, 9363
    s_lshr_b32 s22, s22, 16
    s_mul_i32 s23, s22, 7
    s_sub_u32 s23, s21, s23          ; kth
    s_mov_b32 s12, s36
    s_and_b32 s13, s37, 0xffff
    s_mov_b32 s14, {1792*512*2}
    s_mov_b32 s16, 1024
    s_lshl_b32 s17, s22, 5
    s_lshl_b32 s18, s23, 3           ; kt0
    s_mul_i32 s19, s22, 56
    s_add_u32 s19, s19, s18
    s_lshl_b32 s19, s19, 10
    s_add_u32 s19, s19, {WD}
    s_branch L_prep_wbody
    ''')
    a.label('L_prep_wo')
    a(f'''
    s_sub_u32 s21, s20, 1984
    s_lshr_b32 s22, s21, 4           ; dt
    s_and_b32 s23, s21, 15           ; kth
    s_mov_b32 s12, s30
    s_and_b32 s13, s31, 0xffff
    s_mov_b32 s14, {4096*512*2}
    s_mov_b32 s16, 1024
    s_lshl_b32 s17, s22, 5
    s_lshl_b32 s18, s23, 3
    s_lshl_b32 s19, s22, 7
    s_add_u32 s19, s19, s18
    s_lshl_b32 s19, s19, 10
    s_add_u32 s19, s19, {WO}
    s_branch L_prep_wbody
    ''')
    a.label('L_prep_wgu')
    a(f'''
    s_sub_u32 s21, s20, 1536
    s_lshr_b32 s22, s21, 1           ; nt 0..223
    s_and_b32 s23, s21, 1            ; kth
    s_lshr_b32 s44, s22, 3           ; G
    s_and_b32 s45, s22, 7            ; j
    s_cmp_lt_u32 s45, 4
    s_cselect_b32 s12, s32, s34
    s_cselect_b32 s13, s33, s35
    s_and_b32 s13, s13, 0xffff
    s_mov_b32 s14, {512*1792*2}
    s_mov_b32 s16, 3584
    s_and_b32 s45, s45, 3
    s_lshl_b32 s44, s44, 2
    s_add_u32 s44, s44, s45
    s_lshl_b32 s17, s44, 5
    s_lshl_b32 s18, s23, 3
    s_lshl_b32 s19, s22, 4
    s_add_u32 s19, s19, s18
    s_lshl_b32 s19, s19, 10
    s_add_u32 s19, s19, {WGU}
    s_branch L_prep_wbody
    ''')
    a.label('L_prep_wqkv')
    a(f'''
    s_lshr_b32 s22, s20, 1           ; nt 0..767
    s_and_b32 s23, s20, 1
    s_lshr_b32 s44, s22, 8           ; which
    s_cmp_eq_u32 s44, 0
    s_cselect_b32 s12, s24, s26
    s_cselect_b32 s13, s25, s27
    s_cmp_eq_u32 s44, 2
    s_cselect_b32 s12, s28, s12
    s_cselect_b32 s13, s29, s13
    s_and_b32 s13, s13, 0xffff
    s_mov_b32 s14, {512*4096*2}
    s_mov_b32 s16, 8192
    s_and_b32 s44, s22, 255
    s_lshl_b32 s17, s44, 5
    s_lshl_b32 s18, s23, 3
    s_lshl_b32 s19, s22, 4
    s_add_u32 s19, s19, s18
    s_lshl_b32 s19, s19, 10
    s_add_u32 s19, s19, {WQKV}
    ''')
    a.label('L_prep_wbody')
    a('''
    s_mov_b32 s15, 0x00020000
    v_lshlrev_b32 v6, 2, v4          ; 4g
    v_mul_lo_u32 v6, v6, s16
    v_lshlrev_b32 v7, 1, v3
    v_add3_u32 v6, v6, v7, s17       ; voff
    s_lshl_b32 s46, s18, 5
    s_mul_i32 s46, s46, s16
    ''')
    for kt in range(8):
        for i in range(8):
            r = kt * 32 + (i & 3) + 16 * (i >> 2)
            a(f's_mul_i32 s47, s16, {r}')
            a(f's_add_u32 s47, s47, s46')
            a(f'buffer_load_ushort v{80 + kt*8 + i}, v6, s[12:15], s47 offen')
    a('v_add_u32 v7, s19, v5')
    for kt in range(8):
        a(f's_waitcnt vmcnt({(7-kt)*8 + kt})')
        for j in range(4):
            a(f'v_lshl_or_b32 v{10+kt*4+j}, v{80+kt*8+2*j+1}, 16, v{80+kt*8+2*j}')
        a(f'buffer_store_dwordx4 v[{10+kt*4}:{13+kt*4}], v7, s[40:43], 0 offen offset:{kt*1024 % 4096}')
        if kt == 3:
            a('v_add_u32 v7, 4096, v7')
    a('s_branch L_prep_done')

    a.label('L_prep_misc')
    srd(a, 12, 6, 8192)
    a(f'''
    v_and_b32 v6, 7, v2              ; row
    v_lshlrev_b32 v6, 10, v6
    v_bfe_u32 v7, v2, 3, 2           ; g
    v_lshl_add_u32 v6, v7, 3, v6
    v_lshrrev_b32 v7, 5, v2          ; hw
    v_lshl_add_u32 v6, v7, 6, v6     ; + hw*64B
    s_lshl_b32 s20, s3, 8
    v_add_u32 v6, s20, v6
    ''')
    for i in range(2):
        a(f'buffer_load_dwordx2 v[{10+i*4}:{11+i*4}], v6, s[12:15], 0 offen offset:{i*128}')
        a(f'buffer_load_dwordx2 v[{12+i*4}:{13+i*4}], v6, s[12:15], 0 offen offset:{i*128+32}')
    a(f'''
    s_lshl_b32 s20, s3, 11
    s_add_u32 s20, s20, {MEMF}
    v_add_u32 v7, s20, v5
    v_mov_b32 v30, -1
    v_mov_b32 v31, -1
    v_mov_b32 v32, -1
    v_mov_b32 v33, -1
    v_lshlrev_b32 v9, 5, v0
    v_add_u32 v9, {MEMF + 8192}, v9
    buffer_store_dwordx4 v[30:33], v9, s[40:43], 0 offen
    buffer_store_dwordx4 v[30:33], v9, s[40:43], 0 offen offset:16
    s_waitcnt vmcnt(2)
    ''')
    for i in range(2):
        a(f'buffer_store_dwordx4 v[{10+i*4}:{13+i*4}], v7, s[40:43], 0 offen offset:{i*1024}')
    a('s_branch L_prep_done')

    a.label('L_prep_ln')
    srd(a, 12, 4, 2048 * 512 * 2)
    a(f'''
    v_mov_b32 v30, -1
    v_mov_b32 v31, -1
    v_mov_b32 v32, -1
    v_mov_b32 v33, -1
    s_lshl_b32 s20, s2, 15
    s_add_u32 s20, s20, {PART}
    v_lshlrev_b32 v9, 4, v0
    ''')
    for i in range(8):
        a(f's_add_u32 s21, s20, {i*4096}')
        a(f'buffer_store_dwordx4 v[30:33], v9, s[40:43], s21 offen')
    a('''
    s_lshl_b32 s20, s2, 2
    s_add_u32 s20, s20, s3           ; tt
    s_lshl_b32 s21, s20, 14
    v_lshlrev_b32 v6, 10, v3
    v_lshl_add_u32 v6, v4, 3, v6
    v_add_u32 v6, s21, v6
    ''')
    for kt in range(16):
        a(f'buffer_load_dwordx2 v[{10+kt*4}:{11+kt*4}], v6, s[12:15], 0 offen offset:{kt*64}')
        a(f'buffer_load_dwordx2 v[{12+kt*4}:{13+kt*4}], v6, s[12:15], 0 offen offset:{kt*64+32}')
    a('''
    v_xor_b32 v7, 16, v2
    v_lshlrev_b32 v7, 2, v7
    v_xor_b32 v8, 32, v2
    v_lshlrev_b32 v8, 2, v8
    s_waitcnt vmcnt(0)
    ''')
    F = 80
    for j in range(64):
        a(f'v_lshlrev_b32 v{F+2*j}, 16, v{10+j}')
        a(f'v_and_b32 v{F+2*j+1}, 0xffff0000, v{10+j}')
    a(f'v_add_f32 v74, v{F}, v{F+1}')
    a(f'v_add_f32 v75, v{F+2}, v{F+3}')
    for j in range(4, 128, 2):
        a(f'v_add_f32 v74, v74, v{F+j}')
        a(f'v_add_f32 v75, v75, v{F+j+1}')
    a('v_add_f32 v74, v74, v75')

    def xreduce(reg):
        a(f'''
        ds_bpermute_b32 v76, v7, v{reg}
        s_waitcnt lgkmcnt(0)
        v_add_f32 v{reg}, v{reg}, v76
        ds_bpermute_b32 v76, v8, v{reg}
        s_waitcnt lgkmcnt(0)
        v_add_f32 v{reg}, v{reg}, v76
        ''')
    xreduce(74)
    a('v_mul_f32 v74, 0x3b000000, v74')
    a('v_mov_b32 v75, 0')
    a('v_mov_b32 v77, 0')
    for j in range(0, 128, 2):
        a(f'v_sub_f32 v78, v{F+j}, v74')
        a(f'v_sub_f32 v79, v{F+j+1}, v74')
        a(f'v_fmac_f32 v75, v78, v78')
        a(f'v_fmac_f32 v77, v79, v79')
    a('v_add_f32 v75, v75, v77')
    xreduce(75)
    a('''
    v_mul_f32 v75, 0x3b000000, v75   ; var
    v_cvt_pk_bf16_f32 v76, v74, v75
    v_lshlrev_b32 v74, 16, v76       ; m_bf
    v_and_b32 v75, 0xffff0000, v76   ; var_bf
    v_add_f32 v75, 0x3727c5ac, v75   ; + 1e-5
    v_cvt_pk_bf16_f32 v76, v75, v75
    v_lshlrev_b32 v75, 16, v76
    v_sqrt_f32 v75, v75
    s_nop 0
    v_cvt_pk_bf16_f32 v76, v75, v75
    v_lshlrev_b32 v75, 16, v76
    v_rcp_f32 v75, v75
    s_nop 0
    ''')
    for j in range(64):
        a(f'''
        v_sub_f32 v78, v{F+2*j}, v74
        v_sub_f32 v79, v{F+2*j+1}, v74
        v_cvt_pk_bf16_f32 v76, v78, v79
        v_lshlrev_b32 v78, 16, v76
        v_and_b32 v79, 0xffff0000, v76
        v_mul_f32 v78, v78, v75
        v_mul_f32 v79, v79, v75
        v_cvt_pk_bf16_f32 v{10+j}, v78, v79
        ''')
    a(f'''
    s_lshl_b32 s21, s20, 14
    v_add_u32 v7, s21, v5
    ''')
    for kt in range(16):
        a(f'buffer_store_dwordx4 v[{10+kt*4}:{13+kt*4}], v7, s[40:43], 0 offen offset:{(kt%4)*1024}')
        if kt % 4 == 3:
            a('v_add_u32 v7, 4096, v7')
    a.label('L_prep_done')
    a('s_endpgm')
    return kernel_desc(name, 208, 48)
```

```python
from common import *

AT_WGS = 512


def gen_attn(a):
    name = 'attn_kernel'
    kernel_header(a, name)
    a(f'''
    s_cmp_ge_u32 s2, {AT_WGS}
    s_cbranch_scc1 L_at_done
    s_load_dwordx2 s[8:9], s[0:1], 104
    v_lshrrev_b32 v2, 6, v0
    v_and_b32 v6, 63, v0
    v_lshlrev_b32 v1, 4, v6
    v_readfirstlane_b32 s3, v2
    v_lshlrev_b32 v3, 3, v6
    v_and_b32 v8, 15, v6             ; col
    v_lshrrev_b32 v9, 4, v6          ; g
    s_lshl_b32 s4, s2, 2
    s_add_u32 s4, s4, s3             ; unit
    s_lshr_b32 s5, s4, 5             ; seg
    s_and_b32 s6, s4, 31             ; h
    s_waitcnt lgkmcnt(0)
    ''')
    srd(a, 40, 8, WS_BYTES)
    a(f'''
    s_lshl_b32 s10, s5, 8
    s_lshl_b32 s11, s6, 2
    s_add_u32 s10, s10, s11
    s_lshl_b32 s10, s10, 10
    s_add_u32 s12, s10, {QF}
    s_add_u32 s13, s12, {128*KB}
    s_add_u32 s14, s10, {KF}
    s_add_u32 s15, s14, {128*KB}
    s_add_u32 s20, s10, {OF}
    s_add_u32 s21, s20, {128*KB}
    s_lshl_b32 s16, s5, 7
    s_add_u32 s16, s16, s11
    s_lshl_b32 s16, s16, 10
    s_add_u32 s16, s16, {KMF}
    s_lshl_b32 s17, s5, 8
    s_lshl_b32 s11, s6, 3
    s_add_u32 s17, s17, s11          ; seg*256 + h*8
    s_lshl_b32 s18, s17, 9
    s_add_u32 s18, s18, {VMF}
    s_lshl_b32 s17, s17, 10
    s_add_u32 s17, s17, {VF}
    s_add_u32 s19, s17, 4096
    s_mov_b32 s69, 0x3db504f3
    s_mov_b32 s70, 0x3fb8aa3b
    ''')
    for qt in range(2):
        for ks in range(4):
            a(f'buffer_load_dwordx4 v[{10+qt*16+ks*4}:{13+qt*16+ks*4}], v1, s[40:43], s{12+qt} offen offset:{ks*1024}')
    for ks in range(4):
        a(f'buffer_load_dwordx4 v[{74+ks*4}:{77+ks*4}], v1, s[40:43], s16 offen offset:{ks*1024}')
    for kb in range(2):
        for ks in range(4):
            a(f'buffer_load_dwordx4 v[{42+kb*16+ks*4}:{45+kb*16+ks*4}], v1, s[40:43], s{14+kb} offen offset:{ks*1024}')
    for et in range(8):
        a(f'buffer_load_dwordx2 v[{90+et*8}:{91+et*8}], v3, s[40:43], s18 offen offset:{et*512}')
        a(f'buffer_load_dwordx4 v[{92+et*8}:{95+et*8}], v1, s[40:43], s{17 if et < 4 else 19} offen offset:{(et%4)*1024}')
        a(f'v_mov_b32 v{96+et*8}, 0')
        a(f'v_mov_b32 v{97+et*8}, 0')
    a('v_cmp_gt_u32 s[60:61], 32, v6')
    a('v_lshlrev_b32 v4, 2, v9')
    for r in range(4):
        a(f'v_add_u32 v5, {r}, v4')
        a(f'v_cmp_le_u32 s[{72+2*r}:{73+2*r}], v5, v8')
    tiles = [(154, 'm', 0), (158, 'x0', 0), (162, 'm', 1), (166, 'x0', 1), (170, 'x1', 1)]
    a('s_waitcnt vmcnt(16)')
    for (reg, kb, qt) in tiles:
        for ks in range(4):
            if kb == 'm':
                A = 74 + ks * 4
            elif kb == 'x0':
                A = 42 + ks * 4
            else:
                A = 58 + ks * 4
            B = 10 + qt * 16 + ks * 4
            acc = f'v[{reg}:{reg+3}]'
            a(f'v_mfma_f32_16x16x32_bf16 {acc}, v[{A}:{A+3}], v[{B}:{B+3}], {"0" if ks == 0 else acc}')
    a('s_nop 7')
    a('s_nop 1')
    a('v_mov_b32 v255, 0xf149f2ca')
    for i in range(0, 20, 2):
        r = 154 + i
        a(f'''
        v_cvt_pk_bf16_f32 v250, v{r}, v{r+1}
        v_lshlrev_b32 v251, 16, v250
        v_and_b32 v252, 0xffff0000, v250
        v_mul_f32 v251, s69, v251
        v_mul_f32 v252, s69, v252
        v_cvt_pk_bf16_f32 v250, v251, v252
        v_lshlrev_b32 v{r}, 16, v250
        v_and_b32 v{r+1}, 0xffff0000, v250
        ''')
    for r in range(4):
        a(f'v_cndmask_b32 v{154+r}, v255, v{154+r}, s[60:61]')
        a(f'v_cndmask_b32 v{162+r}, v255, v{162+r}, s[60:61]')
        a(f'v_cndmask_b32 v{158+r}, v255, v{158+r}, s[{72+2*r}:{73+2*r}]')
        a(f'v_cndmask_b32 v{170+r}, v255, v{170+r}, s[{72+2*r}:{73+2*r}]')

    def xred(op, r, t):
        a(f'''
        v_mov_b32 v{t}, v{r}
        s_nop 1
        v_permlane32_swap_b32 v{r}, v{t}
        {op} v{r}, v{r}, v{t}
        v_mov_b32 v{t}, v{r}
        s_nop 1
        v_permlane16_swap_b32 v{r}, v{t}
        {op} v{r}, v{r}, v{t}
        ''')

    for (base, n, pdst) in ((154, 8, 174), (162, 12, 178)):
        a(f'v_max3_f32 v250, v{base}, v{base+1}, v{base+2}')
        for i in range(3, n, 2):
            if i + 1 < n:
                a(f'v_max3_f32 v250, v250, v{base+i}, v{base+i+1}')
            else:
                a(f'v_max_f32 v250, v250, v{base+i}')
        xred('v_max_f32', 250, 251)
        a('v_mul_f32 v250, s70, v250')
        for i in range(n):
            a(f'v_fma_f32 v{base+i}, v{base+i}, s70, -v250')
        for i in range(n):
            a(f'v_exp_f32 v{base+i}, v{base+i}')
        a('s_nop 0')
        a(f'v_add_f32 v250, v{base}, v{base+1}')
        for i in range(2, n):
            a(f'v_add_f32 v250, v250, v{base+i}')
        xred('v_add_f32', 250, 251)
        a('v_rcp_f32 v250, v250')
        a('s_nop 0')
        for i in range(n):
            a(f'v_mul_f32 v{base+i}, v{base+i}, v250')
        for i in range(0, n, 2):
            a(f'v_cvt_pk_bf16_f32 v{pdst+i//2}, v{base+i}, v{base+i+1}')
    a('''
    v_mov_b32 v184, 0
    v_mov_b32 v185, 0
    s_waitcnt vmcnt(0)
    s_nop 1
    ''')
    for et in range(8):
        V = 90 + et * 8
        o0 = 186 + (et * 2) * 4
        o1 = o0 + 4
        a(f'v_mfma_f32_16x16x32_bf16 v[{o0}:{o0+3}], v[{V}:{V+3}], v[174:177], 0')
        a(f'v_mfma_f32_16x16x32_bf16 v[{o1}:{o1+3}], v[{V}:{V+3}], v[178:181], 0')
        a(f'v_mfma_f32_16x16x32_bf16 v[{o1}:{o1+3}], v[{V+4}:{V+7}], v[182:185], v[{o1}:{o1+3}]')
    a('s_nop 7')
    a('s_nop 1')
    for qt in range(2):
        for p in range(4):
            a0 = 186 + ((2 * p) * 2 + qt) * 4
            a1 = 186 + ((2 * p + 1) * 2 + qt) * 4
            d = 10 + (qt * 4 + p) * 4
            a(f'''
            v_cvt_pk_bf16_f32 v{d}, v{a0}, v{a0+1}
            v_cvt_pk_bf16_f32 v{d+1}, v{a0+2}, v{a0+3}
            v_cvt_pk_bf16_f32 v{d+2}, v{a1}, v{a1+1}
            v_cvt_pk_bf16_f32 v{d+3}, v{a1+2}, v{a1+3}
            buffer_store_dwordx4 v[{d}:{d+3}], v1, s[40:43], s{20+qt} offen offset:{p*1024}
            ''')
    a.label('L_at_done')
    a('s_endpgm')
    return kernel_desc(name, 256, 80)


def attn_body(a, ST='', LD=''):
    a(f'''
    s_lshl_b32 s10, s5, 8
    s_lshl_b32 s11, s6, 2
    s_add_u32 s10, s10, s11
    s_lshl_b32 s10, s10, 10
    s_add_u32 s12, s10, {QF}
    s_add_u32 s13, s12, {128*KB}
    s_add_u32 s14, s10, {KF}
    s_add_u32 s15, s14, {128*KB}
    s_add_u32 s20, s10, {OF}
    s_add_u32 s21, s20, {128*KB}
    s_lshl_b32 s16, s5, 7
    s_add_u32 s16, s16, s11
    s_lshl_b32 s16, s16, 10
    s_add_u32 s16, s16, {KMF}
    s_lshl_b32 s17, s5, 8
    s_lshl_b32 s11, s6, 3
    s_add_u32 s17, s17, s11          ; seg*256 + h*8
    s_lshl_b32 s18, s17, 9
    s_add_u32 s18, s18, {VMF}
    s_lshl_b32 s17, s17, 10
    s_add_u32 s17, s17, {VF}
    s_add_u32 s19, s17, 4096
    s_mov_b32 s69, 0x3db504f3
    s_mov_b32 s70, 0x3fb8aa3b
    ''')
    for qt in range(2):
        for ks in range(4):
            a(f'buffer_load_dwordx4 v[{10+qt*16+ks*4}:{13+qt*16+ks*4}], v1, s[40:43], s{12+qt} offen offset:{ks*1024} {LD}')
    for ks in range(4):
        a(f'buffer_load_dwordx4 v[{74+ks*4}:{77+ks*4}], v1, s[40:43], s16 offen offset:{ks*1024} {LD}')
    for kb in range(2):
        for ks in range(4):
            a(f'buffer_load_dwordx4 v[{42+kb*16+ks*4}:{45+kb*16+ks*4}], v1, s[40:43], s{14+kb} offen offset:{ks*1024} {LD}')
    for et in range(8):
        a(f'buffer_load_dwordx2 v[{90+et*8}:{91+et*8}], v3, s[40:43], s18 offen offset:{et*512} {LD}')
        a(f'buffer_load_dwordx4 v[{92+et*8}:{95+et*8}], v1, s[40:43], s{17 if et < 4 else 19} offen offset:{(et%4)*1024} {LD}')
        a(f'v_mov_b32 v{96+et*8}, 0')
        a(f'v_mov_b32 v{97+et*8}, 0')
    a('v_cmp_gt_u32 s[60:61], 32, v6')
    a('v_lshlrev_b32 v4, 2, v9')
    for r in range(4):
        a(f'v_add_u32 v5, {r}, v4')
        a(f'v_cmp_le_u32 s[{72+2*r}:{73+2*r}], v5, v8')
    tiles = [(154, 'm', 0), (158, 'x0', 0), (162, 'm', 1), (166, 'x0', 1), (170, 'x1', 1)]
    a('s_waitcnt vmcnt(16)')
    for (reg, kb, qt) in tiles:
        for ks in range(4):
            if kb == 'm':
                A = 74 + ks * 4
            elif kb == 'x0':
                A = 42 + ks * 4
            else:
                A = 58 + ks * 4
            B = 10 + qt * 16 + ks * 4
            acc = f'v[{reg}:{reg+3}]'
            a(f'v_mfma_f32_16x16x32_bf16 {acc}, v[{A}:{A+3}], v[{B}:{B+3}], {"0" if ks == 0 else acc}')
    a('s_nop 7')
    a('s_nop 1')
    a('v_mov_b32 v255, 0xf149f2ca')
    for i in range(0, 20, 2):
        r = 154 + i
        a(f'''
        v_cvt_pk_bf16_f32 v250, v{r}, v{r+1}
        v_lshlrev_b32 v251, 16, v250
        v_and_b32 v252, 0xffff0000, v250
        v_mul_f32 v251, s69, v251
        v_mul_f32 v252, s69, v252
        v_cvt_pk_bf16_f32 v250, v251, v252
        v_lshlrev_b32 v{r}, 16, v250
        v_and_b32 v{r+1}, 0xffff0000, v250
        ''')
    for r in range(4):
        a(f'v_cndmask_b32 v{154+r}, v255, v{154+r}, s[60:61]')
        a(f'v_cndmask_b32 v{162+r}, v255, v{162+r}, s[60:61]')
        a(f'v_cndmask_b32 v{158+r}, v255, v{158+r}, s[{72+2*r}:{73+2*r}]')
        a(f'v_cndmask_b32 v{170+r}, v255, v{170+r}, s[{72+2*r}:{73+2*r}]')

    def xred(op, r, t):
        a(f'''
        v_mov_b32 v{t}, v{r}
        s_nop 1
        v_permlane32_swap_b32 v{r}, v{t}
        {op} v{r}, v{r}, v{t}
        v_mov_b32 v{t}, v{r}
        s_nop 1
        v_permlane16_swap_b32 v{r}, v{t}
        {op} v{r}, v{r}, v{t}
        ''')

    for (base, n, pdst) in ((154, 8, 174), (162, 12, 178)):
        a(f'v_max3_f32 v250, v{base}, v{base+1}, v{base+2}')
        for i in range(3, n, 2):
            if i + 1 < n:
                a(f'v_max3_f32 v250, v250, v{base+i}, v{base+i+1}')
            else:
                a(f'v_max_f32 v250, v250, v{base+i}')
        xred('v_max_f32', 250, 251)
        a('v_mul_f32 v250, s70, v250')
        for i in range(n):
            a(f'v_fma_f32 v{base+i}, v{base+i}, s70, -v250')
        for i in range(n):
            a(f'v_exp_f32 v{base+i}, v{base+i}')
        a('s_nop 0')
        a(f'v_add_f32 v250, v{base}, v{base+1}')
        for i in range(2, n):
            a(f'v_add_f32 v250, v250, v{base+i}')
        xred('v_add_f32', 250, 251)
        a('v_rcp_f32 v250, v250')
        a('s_nop 0')
        for i in range(n):
            a(f'v_mul_f32 v{base+i}, v{base+i}, v250')
        for i in range(0, n, 2):
            a(f'v_cvt_pk_bf16_f32 v{pdst+i//2}, v{base+i}, v{base+i+1}')
    a('''
    v_mov_b32 v184, 0
    v_mov_b32 v185, 0
    s_waitcnt vmcnt(0)
    s_nop 1
    ''')
    for et in range(8):
        V = 90 + et * 8
        o0 = 186 + (et * 2) * 4
        o1 = o0 + 4
        a(f'v_mfma_f32_16x16x32_bf16 v[{o0}:{o0+3}], v[{V}:{V+3}], v[174:177], 0')
        a(f'v_mfma_f32_16x16x32_bf16 v[{o1}:{o1+3}], v[{V}:{V+3}], v[178:181], 0')
        a(f'v_mfma_f32_16x16x32_bf16 v[{o1}:{o1+3}], v[{V+4}:{V+7}], v[182:185], v[{o1}:{o1+3}]')
    a('s_nop 7')
    a('s_nop 1')
    for qt in range(2):
        for p in range(4):
            a0 = 186 + ((2 * p) * 2 + qt) * 4
            a1 = 186 + ((2 * p + 1) * 2 + qt) * 4
            d = 10 + (qt * 4 + p) * 4
            a(f'''
            v_cvt_pk_bf16_f32 v{d}, v{a0}, v{a0+1}
            v_cvt_pk_bf16_f32 v{d+1}, v{a0+2}, v{a0+3}
            v_cvt_pk_bf16_f32 v{d+2}, v{a1}, v{a1+1}
            v_cvt_pk_bf16_f32 v{d+3}, v{a1+2}, v{a1+3}
            buffer_store_dwordx4 v[{d}:{d+3}], v1, s[40:43], s{20+qt} offen offset:{p*1024} {ST}
            ''')
```

```python
from common import *
import os
import k_gemm1, k_attn, k_gemm2

TILEF = FLAGS
CHF = FLAGS + 4096
ATC = FLAGS + 4352
NTASK = 992 + 32 * 24
CO = 'sc0 sc1'

CH_WGS = 256
SCR = 128 * KB
OFR = 134 * KB
MEML = 136 * KB
ROLE = 144 * KB
CH_LDS = 145 * KB
SPIN = 1 << 20
STAMP = int(os.environ.get('STAMP', '0'))


class LdsQ:
    def __init__(self, a):
        self.a = a
        self.order = []
        self.done = -1

    def issue(self, tag, text):
        self.a(text)
        self.order.append(tag)

    def need(self, tag):
        i = self.order.index(tag)
        if i <= self.done:
            return
        n = len(self.order) - 1 - i
        self.a(f's_waitcnt lgkmcnt({min(n, 15)})')
        self.done = i


def gen_chain(a):
    def stamp(i):
        if STAMP:
            a(f'''
            s_memtime s[96:97]
            s_waitcnt lgkmcnt(0)
            s_mov_b32 s{80+i}, s96
            ''')

    name = 'chain_kernel'
    kernel_header(a, name)
    a(f'''
    s_cmp_ge_u32 s2, {CH_WGS}
    s_cbranch_scc1 L_ch_done
    s_load_dwordx2 s[8:9], s[0:1], 104
    s_load_dwordx2 s[10:11], s[0:1], 96
    v_lshrrev_b32 v2, 6, v0
    v_and_b32 v6, 63, v0             ; lane
    v_lshlrev_b32 v1, 4, v6          ; lane*16
    v_readfirstlane_b32 s3, v2       ; wave
    v_lshlrev_b32 v3, 3, v6          ; lane*8
    s_waitcnt lgkmcnt(0)
    ''')
    srd(a, 40, 8, WS_BYTES)
    srd(a, 44, 10, 256)
    a(f'''
    s_cmp_lg_u32 s3, 0
    s_cbranch_scc1 L_ch_role_wait
    s_getreg_b32 s12, hwreg(HW_REG_XCC_ID)
    s_and_b32 s12, s12, 7
    s_mov_b64 exec, 1
    v_mov_b32 v10, 1
    s_lshl_b32 s13, s12, 2
    v_mov_b32 v11, s13
    v_mov_b32 v12, 1
    v_mov_b32 v13, 32
    v_mov_b32 v16, 36
    buffer_atomic_add v10, v11, s[44:47], 0 offen sc0 sc1
    buffer_atomic_add v12, v13, s[44:47], 0 offen sc0 sc1
    s_waitcnt vmcnt(0)
    v_readfirstlane_b32 s13, v10
    v_readfirstlane_b32 s14, v12
    s_add_u32 s15, s12, 1
    s_cmp_lg_u32 s13, 31
    s_cbranch_scc1 L_ch_role_poll
    v_mov_b32 v14, s15
    v_mov_b32 v15, 0
    buffer_atomic_cmpswap v[14:15], v16, s[44:47], 0 offen sc1
    s_waitcnt vmcnt(0)
    ''')
    a.label('L_ch_role_poll')
    a(f's_mov_b32 s19, {SPIN}')
    a.label('L_ch_role_loop')
    a(f'''
    buffer_load_dwordx2 v[18:19], v13, s[44:47], 0 offen sc0 sc1
    s_waitcnt vmcnt(0)
    v_readfirstlane_b32 s16, v18     ; count
    v_readfirstlane_b32 s17, v19     ; winner
    s_cmp_lg_u32 s17, 0
    s_cbranch_scc1 L_ch_role_dec
    s_sub_u32 s19, s19, 1
    s_cmp_eq_u32 s19, 0
    s_cbranch_scc1 L_ch_role_dec
    s_cmp_lt_u32 s16, {CH_WGS}
    s_cbranch_scc1 L_ch_role_loop
    v_mov_b32 v14, 100
    v_mov_b32 v15, 0
    buffer_atomic_cmpswap v[14:15], v16, s[44:47], 0 offen sc1
    s_waitcnt vmcnt(0)
    s_branch L_ch_role_loop
    ''')
    a.label('L_ch_role_dec')
    a(f'''
    s_mov_b32 s18, 0xffff
    s_cmp_eq_u32 s17, 100
    s_cbranch_scc0 L_ch_role_fast
    s_or_b32 s20, s14, 0x100
    s_cmp_lt_u32 s14, 32
    s_cselect_b32 s18, s20, s18
    s_branch L_ch_role_wr
    ''')
    a.label('L_ch_role_fast')
    a('''
    s_cmp_lg_u32 s17, s15
    s_cbranch_scc1 L_ch_role_wr
    s_cmp_lt_u32 s13, 32
    s_cselect_b32 s18, s13, s18
    ''')
    a.label('L_ch_role_wr')
    a(f'''
    v_mov_b32 v10, s18
    v_mov_b32 v11, {ROLE}
    ds_write_b32 v11, v10
    s_waitcnt lgkmcnt(0)
    s_mov_b64 exec, -1
    ''')
    a.label('L_ch_role_wait')
    a(f'''
    s_barrier
    v_mov_b32 v11, {ROLE}
    ds_read_b32 v10, v11
    s_waitcnt lgkmcnt(0)
    v_readfirstlane_b32 s18, v10
    s_cmp_eq_u32 s18, 0xffff
    s_cbranch_scc1 L_w_entry
    s_and_b32 s4, s18, 0xff          ; h
    s_lshr_b32 s5, s18, 8            ; mode
    ''')
    a(f'''
    s_lshl_b32 s6, s4, 3
    s_lshl_b32 s7, s3, 1
    s_add_u32 s6, s6, s7             ; h*8+2w
    s_lshl_b32 s6, s6, 14
    s_add_u32 s6, s6, {WQKV}
    ''')
    for ti in range(4):
        which, sub = ti // 2, ti % 2
        for q4 in range(4):
            a(f's_add_u32 s7, s6, {which*256*16*KB + sub*16*KB + q4*4*KB}')
            for j in range(4):
                kt = q4 * 4 + j
                a(f'buffer_load_dwordx4 a[{ti*64+kt*4}:{ti*64+kt*4+3}], v1, s[40:43], s7 offen offset:{j*1024}')
    a(f'''
    s_lshl_b32 s13, s3, 15
    ''')
    for c in range(8):
        a(f'''
        s_add_u32 m0, s13, {c*4096}
        s_add_u32 s7, s6, {2*256*16*KB + c*4*KB}
        ''')
        for j in range(4):
            a(f'buffer_load_dwordx4 v1, s[40:43], s7 offen offset:{j*1024} lds')
    a(f'''
    s_lshl_b32 s6, s3, 20
    s_lshl_b32 s7, s4, 12            ; h*4KB
    s_add_u32 s6, s6, s7
    s_add_u32 s6, s6, {WO}
    s_lshl_b32 s7, s3, 15
    ''')
    for dtl in range(8):
        a(f's_add_u32 s12, s6, {dtl*128*KB}')
        for ks in range(4):
            r = 128 + (dtl * 4 + ks) * 4
            a(f'buffer_load_dwordx4 v[{r}:{r+3}], v1, s[40:43], s12 offen offset:{ks*1024}')
    a(f'''
    v_add_u32 v4, s7, v1
    v_and_b32 v34, 15, v6            ; col
    v_lshrrev_b32 v35, 4, v6         ; g
    v_and_b32 v36, 7, v6             ; col&7
    v_lshl_add_u32 v5, v35, 3, v36
    v_lshlrev_b32 v5, 4, v5
    v_cmp_gt_u32 s[60:61], 8, v34
    v_cmp_gt_u32 s[62:63], 32, v6    ; lanes < 32 (g<2)
    v_cmp_gt_u32 s[76:77], 8, v6     ; lanes < 8
    s_mul_i32 s12, s3, 1536
    s_add_u32 s12, s12, {SCR}
    v_add_u32 v8, s12, v5
    v_lshrrev_b32 v37, 3, v34        ; col>>3
    v_add_u32 v7, s3, v37
    v_add_u32 v7, 1, v7
    v_and_b32 v7, 3, v7              ; (w+1+hi)&3
    v_mul_u32_u24 v7, 1536, v7
    v_add3_u32 v7, v7, v5, 0
    v_add_u32 v7, {SCR}, v7
    v_add_u32 v0, s3, v37
    v_add_u32 v0, 3, v0
    v_and_b32 v0, 3, v0              ; (w+3+hi)&3
    v_mul_u32_u24 v0, 1536, v0
    v_add3_u32 v0, v0, v5, 0
    v_add_u32 v0, {SCR}, v0
    v_add_u32 v9, {OFR}, v5
    s_lshl_b32 s12, s3, 9
    v_add_u32 v2, s12, v9
    s_lshl_b32 s12, s3, 11
    s_add_u32 s12, s12, {MEML}
    v_add_u32 v38, s12, v1
    v_lshrrev_b32 v37, 3, v6
    v_lshlrev_b32 v39, 14, v37
    v_lshl_add_u32 v39, v36, 4, v39
    s_lshl_b32 s12, s3, 7
    v_add_u32 v39, s12, v39
    v_mov_b32 v24, 0
    v_mov_b32 v25, 0
    v_mov_b32 v32, 0
    v_mov_b32 v33, 0
    s_mov_b32 s50, 0
    s_lshl_b32 s12, s3, 11
    s_add_u32 s51, s12, {MEMF}
    s_add_u32 s52, s51, 8192         ; next
    s_add_u32 s59, s51, 16384
    s_lshl_b32 s53, s4, 14
    s_lshl_b32 s12, s3, 12
    s_add_u32 s53, s53, s12
    s_add_u32 s53, s53, {PART}
    s_lshl_b32 s54, s4, 9
    s_add_u32 s54, s54, {PART}
    s_lshl_b32 s12, s4, 2
    s_add_u32 s12, s12, s3
    s_lshl_b32 s12, s12, 10          ; (h*4+w) KB
    s_add_u32 s55, s12, {KF}
    s_add_u32 s57, s12, {KMF}
    s_lshl_b32 s12, s4, 3
    s_lshl_b32 s13, s3, 1
    s_add_u32 s12, s12, s13          ; h*8+2w
    s_lshl_b32 s13, s12, 10
    s_add_u32 s56, s13, {VF}
    s_lshl_b32 s13, s12, 9
    s_add_u32 s58, s13, {VMF}
    s_lshr_b32 s12, s4, 1
    s_lshl_b32 s12, s12, 9
    s_and_b32 s13, s4, 1
    s_lshl_b32 s13, s13, 3
    s_add_u32 s68, s12, s13
    s_lshl_b32 s12, s3, 7
    s_add_u32 s68, s68, s12
    s_lshl_b32 s12, s3, 11
    s_sub_u32 s68, s68, s12
    s_mov_b32 s69, 0x3e0293ee        ; scale*log2e
    ''')
    def kvwait(lbl):
        a(f'''
        s_mov_b64 exec, 3
        v_lshlrev_b32 v34, 6, v6
        s_mov_b32 s19, {SPIN}
        ''')
        a.label(lbl + '_loop')
        a(f'''
        buffer_load_dword v35, v34, s[40:43], s71 offen {CO}
        s_waitcnt vmcnt(0)
        v_cmp_eq_u32 vcc, 0, v35
        s_cbranch_vccz {lbl}_ok
        s_sleep 4
        s_sub_u32 s19, s19, 1
        s_cmp_lg_u32 s19, 0
        s_cbranch_scc1 {lbl}_loop
        s_mov_b64 exec, -1
        s_branch L_ch_done
        ''')
        a.label(lbl + '_ok')
        a('''
        s_mov_b64 exec, -1
        s_add_u32 s71, s71, 256
        ''')

    a(f'''
    s_lshr_b32 s71, s4, 1
    s_lshl_b32 s71, s71, 2
    s_add_u32 s71, s71, {TILEF + 64}
    s_lshl_b32 s72, s4, 2
    s_add_u32 s72, s72, {CHF}
    ''')
    kvwait('L_ch_kv0')
    a(f'''
    s_add_u32 s12, s55, {128*KB}
    buffer_load_dwordx4 v[10:13], v1, s[40:43], s55 offen {CO}
    buffer_load_dwordx4 v[14:17], v1, s[40:43], s12 offen {CO}
    buffer_load_dwordx4 v[20:23], v1, s[40:43], s56 offen {CO}
    buffer_load_dwordx4 v[28:31], v1, s[40:43], s56 offen offset:1024 {CO}
    s_waitcnt vmcnt(0)
    s_barrier
    s_cmp_eq_u32 s5, 0
    s_cbranch_scc0 L_ch_slow_step
    ''')

    for mode in ('fast', 'slow'):
        ld = 'sc1' if mode == 'fast' else 'sc0 sc1'
        st = '' if mode == 'fast' else 'sc0 sc1'
        L = lambda x: f'L_ch_{mode}_{x}'

        a.label(L('step'))
        stamp(0)
        a(f's_mov_b32 s19, {SPIN}')
        a.label(L('pm_loop'))
        a(f'''
        buffer_load_dwordx4 v[80:83], v1, s[40:43], s51 offen {ld}
        buffer_load_dwordx4 v[84:87], v1, s[40:43], s51 offen offset:1024 {ld}
        s_waitcnt vmcnt(0)
        v_max3_u32 v88, v80, v81, v82
        v_max3_u32 v89, v83, v84, v85
        v_max3_u32 v88, v88, v86, v87
        v_max_u32 v88, v88, v89
        v_cmp_eq_u32 vcc, -1, v88
        s_cbranch_vccz {L('pm_ok')}
        s_sub_u32 s19, s19, 1
        s_cmp_lg_u32 s19, 0
        s_cbranch_scc1 {L('pm_loop')}
        s_branch L_ch_done
        ''')
        a.label(L('pm_ok'))
        stamp(1)
        a(f'''
        ds_write_b128 v38, v[80:83]
        ds_write_b128 v38, v[84:87] offset:1024
        s_waitcnt lgkmcnt(0)
        s_barrier
        s_cmp_lg_u32 s3, 0
        s_cbranch_scc1 {L('nocf')}
        s_mov_b64 exec, 1
        v_mov_b32 v34, s50
        v_mov_b32 v35, 0
        buffer_store_dword v34, v35, s[40:43], s72 offen {CO}
        s_mov_b64 exec, -1
        ''')
        a.label(L('nocf'))
        q = LdsQ(a)

        def rd_mem(kt):
            b = 96 + (kt % 8) * 4
            q.issue(('m', kt), f'ds_read_b128 v[{b}:{b+3}], v9 offset:{MEML - OFR + kt*512}')

        def rd_wv(kt):
            for t in range(2):
                b = 64 + ((kt % 2) * 2 + t) * 4
                q.issue(('w', kt, t), f'ds_read_b128 v[{b}:{b+3}], v4 offset:{(t*16+kt)*1024}')

        def mf_v(kt):
            m = 96 + (kt % 8) * 4
            for t in range(2):
                q.need(('w', kt, t))
                b = 64 + ((kt % 2) * 2 + t) * 4
                acc = f'v[{56+t*4}:{59+t*4}]'
                a(f'v_mfma_f32_16x16x32_bf16 {acc}, v[{m}:{m+3}], v[{b}:{b+3}], {"0" if kt == 0 else acc}')

        rd_mem(0)
        rd_wv(0)
        rd_mem(1)
        rd_wv(1)
        for kt in range(2, 8):
            rd_mem(kt)
        for kt in range(16):
            q.need(('m', kt))
            if kt == 0:
                stamp(2)
            m = 96 + (kt % 8) * 4
            for ti in range(4):
                acc = f'v[{40+ti*4}:{43+ti*4}]'
                a(f'v_mfma_f32_16x16x32_bf16 {acc}, a[{ti*64+kt*4}:{ti*64+kt*4+3}], v[{m}:{m+3}], {"0" if kt == 0 else acc}')
            if kt < 8:
                mf_v(kt)
                rd_mem(kt + 8)
                rd_wv(kt + 2)
        stamp(3)
        a('''
        s_nop 7
        v_cvt_pk_bf16_f32 v34, v40, v41
        v_cvt_pk_bf16_f32 v35, v42, v43
        v_cvt_pk_bf16_f32 v36, v44, v45
        v_cvt_pk_bf16_f32 v37, v46, v47
        v_cvt_pk_bf16_f32 v40, v48, v49
        v_cvt_pk_bf16_f32 v41, v50, v51
        v_cvt_pk_bf16_f32 v42, v52, v53
        v_cvt_pk_bf16_f32 v43, v54, v55
        s_nop 1
        v_mfma_f32_16x16x32_bf16 v[44:47], v[40:43], v[34:37], 0
        v_mfma_f32_16x16x32_bf16 v[48:51], v[10:13], v[34:37], 0
        v_mfma_f32_16x16x32_bf16 v[52:55], v[14:17], v[34:37], 0
        buffer_store_dwordx4 v[40:43], v1, s[40:43], s57 offen sc0 sc1
        ''')
        mf_v(8)
        rd_wv(10)
        a('s_nop 3')
        q.issue('t0', 'ds_write_b128 v8, v[44:47]')
        q.issue('t1', 'ds_write_b128 v8, v[48:51] offset:512')
        q.issue('t2', 'ds_write_b128 v8, v[52:55] offset:1024')
        mf_v(9)
        rd_wv(11)
        q.need('t2')
        a('s_barrier')
        stamp(4)
        for t in range(3):
            q.issue(('r1', t), f'ds_read_b128 v[{80+t*4}:{83+t*4}], v7 offset:{t*512}')
        for t in range(3):
            q.issue(('r2', t), f'ds_read_b128 v[{44+t*4}:{47+t*4}], v0 offset:{t*512}')
        a(f'''
        s_and_b32 s12, s50, 3
        s_cmp_lg_u32 s12, 3
        s_cbranch_scc1 {L('nokv')}
        s_cmp_eq_u32 s50, 63
        s_cbranch_scc1 {L('nokv')}
        ''')
        kvwait(L('kv'))
        a.label(L('nokv'))
        a(f'''
        s_add_u32 s55, s55, {256*KB}
        s_add_u32 s12, s55, {128*KB}
        buffer_load_dwordx4 v[10:13], v1, s[40:43], s55 offen {CO}
        buffer_load_dwordx4 v[14:17], v1, s[40:43], s12 offen {CO}
        v_mov_b32 v95, 0xf149f2ca
        ''')
        mf_v(10)
        rd_wv(12)
        q.need(('r2', 2))
        for i in range(12):
            a(f'v_add_f32 v{44+i}, v{44+i}, v{80+i}')
        mf_v(11)
        rd_wv(13)
        for i in range(12):
            a(f'v_add_f32_dpp v{44+i}, v{44+i}, v{44+i} row_ror:8 row_mask:0xf bank_mask:0xf')
        for i in range(4):
            a(f'v_cndmask_b32 v{44+i}, v95, v{44+i}, s[62:63]')
        mf_v(12)
        rd_wv(14)
        a('''
        v_max3_f32 v92, v48, v49, v50
        v_max3_f32 v93, v51, v52, v53
        v_max3_f32 v94, v54, v55, v44
        v_max3_f32 v92, v92, v45, v46
        v_max3_f32 v93, v93, v94, v47
        v_max_f32 v92, v92, v93
        v_mov_b32 v93, v92
        ''')
        mf_v(13)
        rd_wv(15)
        a('''
        v_permlane32_swap_b32 v92, v93
        v_max_f32 v92, v92, v93
        v_mov_b32 v93, v92
        s_nop 1
        v_permlane16_swap_b32 v92, v93
        v_max_f32 v92, v92, v93
        v_mul_f32 v92, s69, v92
        ''')
        for i in range(12):
            a(f'v_fma_f32 v{44+i}, v{44+i}, s69, -v92')
        mf_v(14)
        for i in range(12):
            a(f'v_exp_f32 v{44+i}, v{44+i}')
            if i == 5:
                mf_v(15)
        a('''
        v_mov_b32 v86, 0
        v_mov_b32 v87, 0
        v_cvt_pk_bf16_f32 v80, v44, v45
        v_cvt_pk_bf16_f32 v81, v46, v47
        v_cvt_pk_bf16_f32 v82, v48, v49
        v_cvt_pk_bf16_f32 v83, v50, v51
        v_cvt_pk_bf16_f32 v84, v52, v53
        v_cvt_pk_bf16_f32 v85, v54, v55
        v_add_f32 v92, v44, v45
        v_add_f32 v93, v46, v47
        v_add_f32 v94, v48, v49
        v_add_f32 v95, v50, v51
        v_cvt_pk_bf16_f32 v18, v56, v57
        v_cvt_pk_bf16_f32 v19, v58, v59
        v_cvt_pk_bf16_f32 v26, v60, v61
        v_cvt_pk_bf16_f32 v27, v62, v63
        v_add_f32 v92, v92, v52
        v_add_f32 v93, v93, v53
        v_mfma_f32_16x16x32_bf16 v[64:67], v[18:21], v[80:83], 0
        v_mfma_f32_16x16x32_bf16 v[68:71], v[26:29], v[80:83], 0
        v_mfma_f32_16x16x32_bf16 v[64:67], v[22:25], v[84:87], v[64:67]
        v_mfma_f32_16x16x32_bf16 v[68:71], v[30:33], v[84:87], v[68:71]
        buffer_store_dwordx2 v[18:19], v3, s[40:43], s58 offen sc0 sc1
        buffer_store_dwordx2 v[26:27], v3, s[40:43], s58 offen offset:512 sc0 sc1
        s_cmp_eq_u32 s50, 63
        s_cbranch_scc1 L_ch_fin
        v_add_f32 v94, v94, v54
        v_add_f32 v95, v95, v55
        v_add_f32 v92, v92, v93
        v_add_f32 v94, v94, v95
        v_add_f32 v92, v92, v94
        v_mov_b32 v93, v92
        s_nop 1
        v_permlane32_swap_b32 v92, v93
        v_add_f32 v92, v92, v93
        v_mov_b32 v93, v92
        s_nop 1
        v_permlane16_swap_b32 v92, v93
        v_add_f32 v92, v92, v93
        v_rcp_f32 v92, v92
        ''')
        a(f'''
        s_add_u32 s56, s56, {256*KB}
        buffer_load_dwordx4 v[20:23], v1, s[40:43], s56 offen {CO}
        buffer_load_dwordx4 v[28:31], v1, s[40:43], s56 offen offset:1024 {CO}
        ''')
        for i in range(8):
            a(f'v_mul_f32 v{64+i}, v{64+i}, v92')
        a('''
        v_cvt_pk_bf16_f32 v72, v64, v65
        v_cvt_pk_bf16_f32 v73, v66, v67
        v_cvt_pk_bf16_f32 v74, v68, v69
        v_cvt_pk_bf16_f32 v75, v70, v71
        ds_write_b128 v2, v[72:75]
        s_waitcnt lgkmcnt(0)
        s_barrier
        ''')
        stamp(5)
        for ks in range(4):
            a(f'ds_read_b128 v[{96+ks*4}:{99+ks*4}], v9 offset:{ks*512}')
        a(f'''
        v_mov_b32 v120, -1
        v_mov_b32 v121, -1
        v_lshlrev_b32 v122, 4, v6
        s_add_u32 s12, s59, s68
        s_mov_b64 exec, s[76:77]
        buffer_store_dwordx2 v[120:121], v122, s[40:43], s12 offen {st}
        s_mov_b64 exec, -1
        ''')
        accs = [40, 44, 48, 52, 56, 60, 112, 116]

        def pstore(dtl):
            a(f'''
            s_mov_b64 exec, s[60:61]
            buffer_store_dwordx4 v[{accs[dtl]}:{accs[dtl]+3}], v5, s[40:43], s53 offen offset:{dtl*512} {st}
            s_mov_b64 exec, -1
            ''')
        for ks in range(4):
            a(f's_waitcnt lgkmcnt({3-ks})')
            for dtl in range(8):
                acc = f'v[{accs[dtl]}:{accs[dtl]+3}]'
                b = 128 + (dtl * 4 + ks) * 4
                a(f'v_mfma_f32_16x16x32_bf16 {acc}, v[{b}:{b+3}], v[{96+ks*4}:{99+ks*4}], {"0" if ks == 0 else acc}')
        for dtl in range(8):
            if dtl == 7:
                a('s_nop 1')
            pstore(dtl)
        stamp(6)
        a(f'''
        s_add_u32 s50, s50, 1
        s_add_u32 s12, s54, {128*KB}
        s_add_u32 s13, s54, {256*KB}
        s_add_u32 s14, s54, {384*KB}
        s_mov_b32 s19, {SPIN}
        ''')
        a.label(L('pr_loop'))
        a(f'''
        buffer_load_dwordx4 v[64:67], v39, s[40:43], s54 offen {ld}
        buffer_load_dwordx4 v[68:71], v39, s[40:43], s12 offen {ld}
        buffer_load_dwordx4 v[72:75], v39, s[40:43], s13 offen {ld}
        buffer_load_dwordx4 v[76:79], v39, s[40:43], s14 offen {ld}
        s_waitcnt vmcnt(0)
        v_max3_u32 v80, v64, v65, v66
        v_max3_u32 v81, v67, v68, v69
        v_max3_u32 v82, v70, v71, v72
        v_max3_u32 v83, v73, v74, v75
        v_max3_u32 v80, v80, v76, v77
        v_max3_u32 v81, v81, v78, v79
        v_max3_u32 v80, v80, v82, v83
        v_max_u32 v80, v80, v81
        v_cmp_eq_u32 vcc, -1, v80
        s_cbranch_vccz {L('pr_ok')}
        s_sub_u32 s19, s19, 1
        s_cmp_lg_u32 s19, 0
        s_cbranch_scc1 {L('pr_loop')}
        s_branch L_ch_done
        ''')
        a.label(L('pr_ok'))
        stamp(7)
        for r in range(4):
            a(f'v_add_f32 v{64+r}, v{64+r}, v{68+r}')
            a(f'v_add_f32 v{72+r}, v{72+r}, v{76+r}')
        for r in range(4):
            a(f'v_add_f32 v{64+r}, v{64+r}, v{72+r}')
        a('s_nop 1')
        for r in range(4):
            a(f'v_add_f32_dpp v{64+r}, v{64+r}, v{64+r} row_ror:8 row_mask:0xf bank_mask:0xf')
        for r in range(4):
            a(f'v_mov_b32 v{68+r}, v{64+r}')
        a('s_nop 0')
        for r in range(4):
            a(f'v_permlane32_swap_b32 v{64+r}, v{68+r}')
        for r in range(4):
            a(f'v_add_f32 v{64+r}, v{64+r}, v{68+r}')
        for r in range(4):
            a(f'v_mov_b32 v{68+r}, v{64+r}')
        a('s_nop 0')
        for r in range(4):
            a(f'v_permlane16_swap_b32 v{64+r}, v{68+r}')
        for r in range(4):
            a(f'v_add_f32 v{64+r}, v{64+r}, v{68+r}')
        a(f'''
        v_cvt_pk_bf16_f32 v64, v64, v65
        v_cvt_pk_bf16_f32 v65, v66, v67
        v_lshlrev_b32 v66, 4, v6
        s_add_u32 s15, s52, s68
        s_mov_b64 exec, s[76:77]
        buffer_store_dwordx2 v[64:65], v66, s[40:43], s15 offen {st}
        s_mov_b64 exec, -1
        v_mov_b32 v68, -1
        v_mov_b32 v69, -1
        v_mov_b32 v70, -1
        v_mov_b32 v71, -1
        buffer_store_dwordx4 v[68:71], v39, s[40:43], s54 offen {st}
        buffer_store_dwordx4 v[68:71], v39, s[40:43], s12 offen {st}
        buffer_store_dwordx4 v[68:71], v39, s[40:43], s13 offen {st}
        buffer_store_dwordx4 v[68:71], v39, s[40:43], s14 offen {st}
        ''')
        stamp(8)
        if STAMP:
            a(f'''
            s_cmp_lg_u32 s3, 0
            s_cbranch_scc1 {L('nost')}
            s_lshl_b32 s12, s50, 6
            s_lshl_b32 s13, s4, 12
            s_add_u32 s12, s12, s13
            s_add_u32 s12, s12, {FLAGS + 65536}
            v_mov_b32 v35, 0
            ''')
            for i in range(9):
                a(f'v_mov_b32 v34, s{80+i}')
                a(f'buffer_store_dword v34, v35, s[40:43], s12 offen offset:{i*4}')
            a.label(L('nost'))
        a(f'''
        s_mov_b32 s12, s51
        s_mov_b32 s51, s52
        s_mov_b32 s52, s59
        s_mov_b32 s59, s12
        s_xor_b32 s53, s53, {512*KB}
        s_xor_b32 s54, s54, {512*KB}
        s_add_u32 s57, s57, {128*KB}
        s_add_u32 s58, s58, {128*KB}
        s_branch {L('step')}
        ''')
    a.label('L_ch_fin')
    a(f'''
    s_waitcnt vmcnt(0)
    s_barrier
    s_cmp_lg_u32 s3, 0
    s_cbranch_scc1 L_ch_done
    s_mov_b64 exec, 1
    v_mov_b32 v34, 64
    v_mov_b32 v35, 0
    buffer_store_dword v34, v35, s[40:43], s72 offen {CO}
    s_branch L_ch_done
    ''')
    a.label('L_w_entry')
    a('''
    s_load_dwordx2 s[10:11], s[0:1], 0
    s_load_dwordx2 s[12:13], s[0:1], 88
    s_waitcnt lgkmcnt(0)
    ''')
    srd(a, 84, 10, 2048 * 512 * 2)
    srd(a, 88, 12, 2048 * 512 * 2)
    a.label('L_w_loop')
    a(f'''
    s_barrier
    s_cmp_lg_u32 s3, 0
    s_cbranch_scc1 L_w_get
    s_mov_b64 exec, 1
    v_mov_b32 v10, 1
    v_mov_b32 v11, 64
    buffer_atomic_add v10, v11, s[44:47], 0 offen sc0 sc1
    v_mov_b32 v11, {ROLE + 4}
    s_waitcnt vmcnt(0)
    ds_write_b32 v11, v10
    s_waitcnt lgkmcnt(0)
    s_mov_b64 exec, -1
    ''')
    a.label('L_w_get')
    a(f'''
    s_barrier
    v_mov_b32 v11, {ROLE + 4}
    ds_read_b32 v10, v11
    v_and_b32 v6, 63, v0
    v_lshlrev_b32 v1, 4, v6
    v_lshlrev_b32 v3, 3, v6
    v_and_b32 v8, 15, v6
    v_lshrrev_b32 v9, 4, v6
    s_waitcnt lgkmcnt(0)
    v_readfirstlane_b32 s2, v10
    s_cmp_ge_u32 s2, {NTASK}
    s_cbranch_scc1 L_ch_done
    s_cmp_ge_u32 s2, 992
    s_cbranch_scc1 L_w_t3
    s_cmp_ge_u32 s2, 512
    s_cbranch_scc1 L_w_t2
    s_lshr_b32 s5, s2, 5
    s_and_b32 s4, s2, 31
    s_add_u32 s4, s4, 16
    s_branch L_w_g1
    ''')
    a.label('L_w_t2')
    a('''
    s_sub_u32 s6, s2, 512
    s_mul_i32 s5, s6, 2185
    s_lshr_b32 s5, s5, 16            ; tb
    s_mul_i32 s7, s5, 30
    s_sub_u32 s4, s6, s7             ; r
    s_add_u32 s7, s4, 32
    s_cmp_lt_u32 s4, 16
    s_cselect_b32 s4, s4, s7
    ''')
    a.label('L_w_g1')
    a('s_mov_b32 s92, s4')
    a('s_mov_b32 s93, s5')
    k_gemm1.gemm1_body(a, ST=CO)
    a(f'''
    s_waitcnt vmcnt(0)
    s_barrier
    s_cmp_lg_u32 s3, 0
    s_cbranch_scc1 L_w_loop
    s_lshl_b32 s6, s93, 6
    s_add_u32 s6, s6, s92
    s_lshl_b32 s6, s6, 2
    s_add_u32 s6, s6, {TILEF}
    s_mov_b64 exec, 1
    v_mov_b32 v10, 1
    v_mov_b32 v11, 0
    buffer_store_dword v10, v11, s[40:43], s6 offen {CO}
    s_mov_b64 exec, -1
    s_branch L_w_loop
    ''')

    def wpoll(lbl, nl):
        a(f'''
        s_mov_b64 exec, {(1 << nl) - 1}
        s_mov_b32 s19, {SPIN}
        ''')
        a.label(lbl + '_loop')
        a(f'''
        buffer_load_dword v12, v10, s[40:43], 0 offen {CO}
        s_waitcnt vmcnt(0)
        v_cmp_lt_u32 vcc, v12, v11
        s_cbranch_vccz {lbl}_ok
        s_sleep 16
        s_sub_u32 s19, s19, 1
        s_cmp_lg_u32 s19, 0
        s_cbranch_scc1 {lbl}_loop
        s_mov_b64 exec, -1
        s_branch L_ch_done
        ''')
        a.label(lbl + '_ok')
        a('s_mov_b64 exec, -1')

    a.label('L_w_t3')
    a(f'''
    s_sub_u32 s6, s2, 992
    s_mul_i32 s92, s6, 2731
    s_lshr_b32 s92, s92, 16          ; sp
    s_mul_i32 s7, s92, 24
    s_sub_u32 s7, s6, s7             ; r
    s_cmp_ge_u32 s7, 16
    s_cbranch_scc1 L_w_g2
    s_lshr_b32 s5, s7, 3
    s_lshl_b32 s6, s92, 1
    s_add_u32 s5, s5, s6             ; seg
    s_and_b32 s6, s7, 7
    s_lshl_b32 s6, s6, 2
    s_add_u32 s6, s6, s3             ; h
    s_lshr_b32 s10, s5, 2            ; tb
    s_lshl_b32 s10, s10, 6
    s_lshr_b32 s11, s6, 1
    s_add_u32 s10, s10, s11
    s_lshl_b32 s10, s10, 2
    s_add_u32 s10, s10, {TILEF}
    v_lshlrev_b32 v10, 6, v6
    v_add_u32 v10, s10, v10
    s_lshl_b32 s10, s6, 2
    s_add_u32 s10, s10, {CHF}
    v_mov_b32 v12, s10
    v_mov_b32 v11, 1
    s_add_u32 s10, s5, 1
    v_mov_b32 v13, s10
    v_cmp_eq_u32 vcc, 3, v6
    s_nop 1
    v_cndmask_b32 v10, v10, v12, vcc
    v_cndmask_b32 v11, v11, v13, vcc
    ''')
    wpoll('L_w_pa', 4)
    k_attn.attn_body(a, ST=CO, LD=CO)
    a(f'''
    s_waitcnt vmcnt(0)
    s_barrier
    s_cmp_lg_u32 s3, 0
    s_cbranch_scc1 L_w_loop
    s_lshl_b32 s6, s92, 2
    s_add_u32 s6, s6, {ATC}
    s_mov_b64 exec, 1
    v_mov_b32 v10, 1
    v_mov_b32 v11, 0
    buffer_atomic_add v10, v11, s[40:43], s6 offen sc1
    s_mov_b64 exec, -1
    s_branch L_w_loop
    ''')
    a.label('L_w_g2')
    a(f'''
    s_sub_u32 s4, s7, 16             ; db
    s_mov_b32 s5, s92                ; sp
    s_lshr_b32 s10, s92, 1
    s_lshl_b32 s10, s10, 8
    s_add_u32 s10, s10, {TILEF + 48*4}
    v_lshlrev_b32 v10, 2, v6
    v_add_u32 v10, s10, v10
    s_lshl_b32 s10, s92, 2
    s_add_u32 s10, s10, {ATC}
    v_mov_b32 v12, s10
    v_mov_b32 v11, 1
    v_mov_b32 v13, 16
    v_cmp_eq_u32 vcc, 14, v6
    s_nop 1
    v_cndmask_b32 v10, v10, v12, vcc
    v_cndmask_b32 v11, v11, v13, vcc
    ''')
    wpoll('L_w_pg', 15)
    k_gemm2.gemm2_body(a, LD=CO)
    a('s_branch L_w_loop')
    a.label('L_ch_done')
    a('s_endpgm')
    return kernel_desc(name, 256, 100, accum=256, nfv=512)
```

```python
from common import *

G1_WGS = 992
G1_LDS = 96 * KB
STAGE = 48 * KB


def gen_gemm1(a):
    name = 'gemm1_kernel'
    kernel_header(a, name)
    a(f'''
    s_cmp_ge_u32 s2, {G1_WGS}
    s_cbranch_scc1 L_g1_done
    s_load_dwordx2 s[8:9], s[0:1], 104
    v_lshrrev_b32 v2, 6, v0
    v_and_b32 v1, 63, v0
    v_lshlrev_b32 v1, 4, v1
    v_readfirstlane_b32 s3, v2       ; wave
    s_lshr_b32 s4, s2, 4             ; nb
    s_and_b32 s5, s2, 15             ; tb
    s_waitcnt lgkmcnt(0)
    ''')
    srd(a, 40, 8, WS_BYTES)
    a(f'''
    s_lshl_b32 s6, s4, 18            ; nb*256KB
    s_add_u32 s6, s6, {WQKV}
    s_lshl_b32 s7, s5, 17            ; tb*128KB
    s_add_u32 s7, s7, {XN - 16*16*KB}
    s_mul_i32 s10, s3, 6
    ''')
    for j in range(6):
        a(f'''
        s_add_u32 s11, s10, {j}
        s_cmp_lt_u32 s11, 16
        s_cselect_b32 s12, s6, s7
        s_lshl_b32 s13, s11, 14
        s_add_u32 s{20+j}, s12, s13
        s_lshl_b32 s{26+j}, s11, 11
        ''')
    a('''
    s_lshr_b32 s14, s3, 1            ; wn
    s_and_b32 s15, s3, 1             ; wt
    s_lshl_b32 s16, s14, 14
    s_lshl_b32 s17, s15, 13
    s_add_u32 s17, s17, 32768
    v_add_u32 v3, s16, v1
    v_add_u32 v4, s17, v1
    ''')
    for r in range(128, 256):
        a(f'v_mov_b32 v{r}, 0')

    def dma(stage):
        buf = (stage & 1) * STAGE
        for j in range(6):
            a(f'''
            s_add_u32 m0, s{26+j}, {buf}
            s_add_u32 s32, s{20+j}, {stage*2048}
            buffer_load_dwordx4 v1, s[40:43], s32 offen lds
            buffer_load_dwordx4 v1, s[40:43], s32 offen offset:1024 lds
            ''')

    def compute(stage, vtype):
        buf = (stage & 1) * STAGE
        for ks in range(2):
            base = 32 + ks * 48
            for n in range(8):
                a(f'ds_read_b128 v[{base+n*4}:{base+n*4+3}], v3 offset:{buf + n*2048 + ks*1024}')
            for t in range(4):
                a(f'ds_read_b128 v[{base+32+t*4}:{base+32+t*4+3}], v4 offset:{buf + t*2048 + ks*1024}')
        for ks in range(2):
            base = 32 + ks * 48
            a(f's_waitcnt lgkmcnt({12 if ks == 0 else 0})')
            for n in range(8):
                for t in range(4):
                    acc = 128 + (n * 4 + t) * 4
                    w = f'v[{base+n*4}:{base+n*4+3}]'
                    x = f'v[{base+32+t*4}:{base+32+t*4+3}]'
                    if vtype:
                        a(f'v_mfma_f32_16x16x32_bf16 v[{acc}:{acc+3}], {x}, {w}, v[{acc}:{acc+3}]')
                    else:
                        a(f'v_mfma_f32_16x16x32_bf16 v[{acc}:{acc+3}], {w}, {x}, v[{acc}:{acc+3}]')

    dma(0)
    a('''
    s_cmp_ge_u32 s4, 32
    s_cbranch_scc0 L_g1_main_n
    s_cmp_lt_u32 s4, 48
    s_cbranch_scc1 L_g1_main_v
    ''')
    for vt in (0, 1):
        a.label('L_g1_main_v' if vt else 'L_g1_main_n')
        for st in range(8):
            a('s_waitcnt vmcnt(0)')
            a('s_barrier')
            if st < 7:
                dma(st + 1)
            compute(st, vt)
        a('s_nop 7')
        a('s_nop 7')
        if vt:
            a(f'''
            s_lshl_b32 s33, s5, 2
            s_lshl_b32 s34, s15, 1
            s_add_u32 s33, s33, s34          ; seg0
            s_lshl_b32 s33, s33, 8           ; *256 et
            s_sub_u32 s34, s4, 32
            s_lshl_b32 s34, s34, 4
            s_add_u32 s33, s33, s34
            s_lshl_b32 s34, s14, 3
            s_add_u32 s33, s33, s34
            s_lshl_b32 s33, s33, 10
            s_add_u32 s33, s33, {VF}
            v_add_u32 v5, s33, v1
            v_add_u32 v6, {256*KB}, v5
            ''')
            k = 0
            for j in range(2):
                for n in range(8):
                    a0 = 128 + (n * 4 + 2 * j) * 4
                    a1 = a0 + 4
                    d = 32 + (k % 8) * 4
                    k += 1
                    a(f'''
                    v_cvt_pk_bf16_f32 v{d}, v{a0}, v{a0+1}
                    v_cvt_pk_bf16_f32 v{d+1}, v{a0+2}, v{a0+3}
                    v_cvt_pk_bf16_f32 v{d+2}, v{a1}, v{a1+1}
                    v_cvt_pk_bf16_f32 v{d+3}, v{a1+2}, v{a1+3}
                    ''')
                    if n == 4:
                        a(f'v_add_u32 v{5+j}, 4096, v{5+j}')
                    a(f'buffer_store_dwordx4 v[{d}:{d+3}], v{5+j}, s[40:43], 0 offen offset:{(n%4)*1024}')
            a('s_branch L_g1_done')
        else:
            a('''
            s_cmp_ge_u32 s4, 48
            s_cbranch_scc1 L_g1_epi_glu
            ''')
            a(f'''
            s_lshl_b32 s33, s5, 3
            s_lshl_b32 s34, s15, 2
            s_add_u32 s33, s33, s34          ; tt0
            s_lshl_b32 s33, s33, 7           ; *128
            s_and_b32 s34, s4, 15
            s_lshl_b32 s34, s34, 3
            s_add_u32 s33, s33, s34
            s_lshl_b32 s34, s14, 2
            s_add_u32 s33, s33, s34
            s_lshl_b32 s33, s33, 10
            s_add_u32 s33, s33, {QF}
            s_cmp_ge_u32 s4, 16
            s_cselect_b32 s34, {KF-QF}, 0
            s_add_u32 s33, s33, s34
            v_add_u32 v5, s33, v1
            ''')
            k = 0
            for t in range(4):
                for p in range(4):
                    a0 = 128 + ((2 * p) * 4 + t) * 4
                    a1 = 128 + ((2 * p + 1) * 4 + t) * 4
                    d = 32 + (k % 8) * 4
                    k += 1
                    a(f'''
                    v_cvt_pk_bf16_f32 v{d}, v{a0}, v{a0+1}
                    v_cvt_pk_bf16_f32 v{d+1}, v{a0+2}, v{a0+3}
                    v_cvt_pk_bf16_f32 v{d+2}, v{a1}, v{a1+1}
                    v_cvt_pk_bf16_f32 v{d+3}, v{a1+2}, v{a1+3}
                    buffer_store_dwordx4 v[{d}:{d+3}], v5, s[40:43], 0 offen offset:{p*1024}
                    ''')
                a(f'v_add_u32 v5, {128*KB}, v5')
            a('s_branch L_g1_done')
            a.label('L_g1_epi_glu')
            a(f'''
            s_lshl_b32 s33, s5, 3
            s_lshl_b32 s34, s15, 2
            s_add_u32 s33, s33, s34          ; tt0
            s_mul_i32 s33, s33, 56
            s_sub_u32 s34, s4, 48
            s_lshl_b32 s34, s34, 1
            s_add_u32 s34, s34, s14
            s_lshl_b32 s34, s34, 1
            s_add_u32 s33, s33, s34
            s_lshl_b32 s33, s33, 10
            s_add_u32 s33, s33, {HF}
            v_add_u32 v5, s33, v1
            s_mov_b32 s35, 0xbfb8aa3b        ; -log2(e)
            ''')
            k = 0
            for t in range(4):
                for p in range(2):
                    d = 32 + (k % 8) * 4
                    k += 1
                    for q in range(2):
                        n = 2 * p + q
                        ga = 128 + (n * 4 + t) * 4
                        ua = 128 + ((n + 4) * 4 + t) * 4
                        for hh in range(2):
                            g0, g1 = ga + 2 * hh, ga + 2 * hh + 1
                            u0, u1 = ua + 2 * hh, ua + 2 * hh + 1
                            a(f'''
                            v_cvt_pk_bf16_f32 v10, v{g0}, v{g1}
                            v_cvt_pk_bf16_f32 v11, v{u0}, v{u1}
                            v_lshlrev_b32 v12, 16, v10
                            v_and_b32 v13, 0xffff0000, v10
                            v_mul_f32 v12, s35, v12
                            v_mul_f32 v13, s35, v13
                            v_exp_f32 v12, v12
                            v_exp_f32 v13, v13
                            v_lshlrev_b32 v14, 16, v11
                            v_add_f32 v12, 1.0, v12
                            v_add_f32 v13, 1.0, v13
                            v_rcp_f32 v12, v12
                            v_rcp_f32 v13, v13
                            v_and_b32 v15, 0xffff0000, v11
                            v_cvt_pk_bf16_f32 v10, v12, v13
                            v_lshlrev_b32 v12, 16, v10
                            v_and_b32 v13, 0xffff0000, v10
                            v_mul_f32 v12, v12, v14
                            v_mul_f32 v13, v13, v15
                            v_cvt_pk_bf16_f32 v{d+2*q+hh}, v12, v13
                            ''')
                    a(f'buffer_store_dwordx4 v[{d}:{d+3}], v5, s[40:43], 0 offen offset:{p*1024}')
                a(f'v_add_u32 v5, {56*KB}, v5')
            a('s_branch L_g1_done')
    a.label('L_g1_done')
    a('s_endpgm')
    return kernel_desc(name, 256, 48)


def gemm1_body(a, ST=''):
    a(f'''
    s_lshl_b32 s6, s4, 18            ; nb*256KB
    s_add_u32 s6, s6, {WQKV}
    s_lshl_b32 s7, s5, 17            ; tb*128KB
    s_add_u32 s7, s7, {XN - 16*16*KB}
    s_mul_i32 s10, s3, 6
    ''')
    for j in range(6):
        a(f'''
        s_add_u32 s11, s10, {j}
        s_cmp_lt_u32 s11, 16
        s_cselect_b32 s12, s6, s7
        s_lshl_b32 s13, s11, 14
        s_add_u32 s{20+j}, s12, s13
        s_lshl_b32 s{26+j}, s11, 11
        ''')
    a('''
    s_lshr_b32 s14, s3, 1            ; wn
    s_and_b32 s15, s3, 1             ; wt
    s_lshl_b32 s16, s14, 14
    s_lshl_b32 s17, s15, 13
    s_add_u32 s17, s17, 32768
    v_add_u32 v3, s16, v1
    v_add_u32 v4, s17, v1
    ''')
    for r in range(128, 256):
        a(f'v_mov_b32 v{r}, 0')

    def dma(stage):
        buf = (stage & 1) * STAGE
        for j in range(6):
            a(f'''
            s_add_u32 m0, s{26+j}, {buf}
            s_add_u32 s32, s{20+j}, {stage*2048}
            buffer_load_dwordx4 v1, s[40:43], s32 offen lds
            buffer_load_dwordx4 v1, s[40:43], s32 offen offset:1024 lds
            ''')

    def compute(stage, vtype):
        buf = (stage & 1) * STAGE
        for ks in range(2):
            base = 32 + ks * 48
            for n in range(8):
                a(f'ds_read_b128 v[{base+n*4}:{base+n*4+3}], v3 offset:{buf + n*2048 + ks*1024}')
            for t in range(4):
                a(f'ds_read_b128 v[{base+32+t*4}:{base+32+t*4+3}], v4 offset:{buf + t*2048 + ks*1024}')
        for ks in range(2):
            base = 32 + ks * 48
            a(f's_waitcnt lgkmcnt({12 if ks == 0 else 0})')
            for n in range(8):
                for t in range(4):
                    acc = 128 + (n * 4 + t) * 4
                    w = f'v[{base+n*4}:{base+n*4+3}]'
                    x = f'v[{base+32+t*4}:{base+32+t*4+3}]'
                    if vtype:
                        a(f'v_mfma_f32_16x16x32_bf16 v[{acc}:{acc+3}], {x}, {w}, v[{acc}:{acc+3}]')
                    else:
                        a(f'v_mfma_f32_16x16x32_bf16 v[{acc}:{acc+3}], {w}, {x}, v[{acc}:{acc+3}]')

    dma(0)
    a('''
    s_cmp_ge_u32 s4, 32
    s_cbranch_scc0 L_g1_main_n
    s_cmp_lt_u32 s4, 48
    s_cbranch_scc1 L_g1_main_v
    ''')
    for vt in (0, 1):
        a.label('L_g1_main_v' if vt else 'L_g1_main_n')
        for st in range(8):
            a('s_waitcnt vmcnt(0)')
            a('s_barrier')
            if st < 7:
                dma(st + 1)
            compute(st, vt)
        a('s_nop 7')
        a('s_nop 7')
        if vt:
            a(f'''
            s_lshl_b32 s33, s5, 2
            s_lshl_b32 s34, s15, 1
            s_add_u32 s33, s33, s34          ; seg0
            s_lshl_b32 s33, s33, 8           ; *256 et
            s_sub_u32 s34, s4, 32
            s_lshl_b32 s34, s34, 4
            s_add_u32 s33, s33, s34
            s_lshl_b32 s34, s14, 3
            s_add_u32 s33, s33, s34
            s_lshl_b32 s33, s33, 10
            s_add_u32 s33, s33, {VF}
            v_add_u32 v5, s33, v1
            v_add_u32 v6, {256*KB}, v5
            ''')
            k = 0
            for j in range(2):
                for n in range(8):
                    a0 = 128 + (n * 4 + 2 * j) * 4
                    a1 = a0 + 4
                    d = 32 + (k % 8) * 4
                    k += 1
                    a(f'''
                    v_cvt_pk_bf16_f32 v{d}, v{a0}, v{a0+1}
                    v_cvt_pk_bf16_f32 v{d+1}, v{a0+2}, v{a0+3}
                    v_cvt_pk_bf16_f32 v{d+2}, v{a1}, v{a1+1}
                    v_cvt_pk_bf16_f32 v{d+3}, v{a1+2}, v{a1+3}
                    ''')
                    if n == 4:
                        a(f'v_add_u32 v{5+j}, 4096, v{5+j}')
                    a(f'buffer_store_dwordx4 v[{d}:{d+3}], v{5+j}, s[40:43], 0 offen offset:{(n%4)*1024} {ST}')
            a('s_branch L_g1_done')
        else:
            a('''
            s_cmp_ge_u32 s4, 48
            s_cbranch_scc1 L_g1_epi_glu
            ''')
            a(f'''
            s_lshl_b32 s33, s5, 3
            s_lshl_b32 s34, s15, 2
            s_add_u32 s33, s33, s34          ; tt0
            s_lshl_b32 s33, s33, 7           ; *128
            s_and_b32 s34, s4, 15
            s_lshl_b32 s34, s34, 3
            s_add_u32 s33, s33, s34
            s_lshl_b32 s34, s14, 2
            s_add_u32 s33, s33, s34
            s_lshl_b32 s33, s33, 10
            s_add_u32 s33, s33, {QF}
            s_cmp_ge_u32 s4, 16
            s_cselect_b32 s34, {KF-QF}, 0
            s_add_u32 s33, s33, s34
            v_add_u32 v5, s33, v1
            ''')
            k = 0
            for t in range(4):
                for p in range(4):
                    a0 = 128 + ((2 * p) * 4 + t) * 4
                    a1 = 128 + ((2 * p + 1) * 4 + t) * 4
                    d = 32 + (k % 8) * 4
                    k += 1
                    a(f'''
                    v_cvt_pk_bf16_f32 v{d}, v{a0}, v{a0+1}
                    v_cvt_pk_bf16_f32 v{d+1}, v{a0+2}, v{a0+3}
                    v_cvt_pk_bf16_f32 v{d+2}, v{a1}, v{a1+1}
                    v_cvt_pk_bf16_f32 v{d+3}, v{a1+2}, v{a1+3}
                    buffer_store_dwordx4 v[{d}:{d+3}], v5, s[40:43], 0 offen offset:{p*1024} {ST}
                    ''')
                a(f'v_add_u32 v5, {128*KB}, v5')
            a('s_branch L_g1_done')
            a.label('L_g1_epi_glu')
            a(f'''
            s_lshl_b32 s33, s5, 3
            s_lshl_b32 s34, s15, 2
            s_add_u32 s33, s33, s34          ; tt0
            s_mul_i32 s33, s33, 56
            s_sub_u32 s34, s4, 48
            s_lshl_b32 s34, s34, 1
            s_add_u32 s34, s34, s14
            s_lshl_b32 s34, s34, 1
            s_add_u32 s33, s33, s34
            s_lshl_b32 s33, s33, 10
            s_add_u32 s33, s33, {HF}
            v_add_u32 v5, s33, v1
            s_mov_b32 s35, 0xbfb8aa3b        ; -log2(e)
            ''')
            k = 0
            for t in range(4):
                for p in range(2):
                    d = 32 + (k % 8) * 4
                    k += 1
                    for q in range(2):
                        n = 2 * p + q
                        ga = 128 + (n * 4 + t) * 4
                        ua = 128 + ((n + 4) * 4 + t) * 4
                        for hh in range(2):
                            g0, g1 = ga + 2 * hh, ga + 2 * hh + 1
                            u0, u1 = ua + 2 * hh, ua + 2 * hh + 1
                            a(f'''
                            v_cvt_pk_bf16_f32 v10, v{g0}, v{g1}
                            v_cvt_pk_bf16_f32 v11, v{u0}, v{u1}
                            v_lshlrev_b32 v12, 16, v10
                            v_and_b32 v13, 0xffff0000, v10
                            v_mul_f32 v12, s35, v12
                            v_mul_f32 v13, s35, v13
                            v_exp_f32 v12, v12
                            v_exp_f32 v13, v13
                            v_lshlrev_b32 v14, 16, v11
                            v_add_f32 v12, 1.0, v12
                            v_add_f32 v13, 1.0, v13
                            v_rcp_f32 v12, v12
                            v_rcp_f32 v13, v13
                            v_and_b32 v15, 0xffff0000, v11
                            v_cvt_pk_bf16_f32 v10, v12, v13
                            v_lshlrev_b32 v12, 16, v10
                            v_and_b32 v13, 0xffff0000, v10
                            v_mul_f32 v12, v12, v14
                            v_mul_f32 v13, v13, v15
                            v_cvt_pk_bf16_f32 v{d+2*q+hh}, v12, v13
                            ''')
                    a(f'buffer_store_dwordx4 v[{d}:{d+3}], v5, s[40:43], 0 offen offset:{p*1024} {ST}')
                a(f'v_add_u32 v5, {56*KB}, v5')
            a('s_branch L_g1_done')
    a.label('L_g1_done')
```

```python
from common import *

G2_WGS = 256
G2_LDS = 128 * KB


def gen_gemm2(a):
    name = 'gemm2_kernel'
    kernel_header(a, name)
    a(f'''
    s_cmp_ge_u32 s2, {G2_WGS}
    s_cbranch_scc1 L_g2_done
    s_load_dwordx2 s[8:9], s[0:1], 104
    s_load_dwordx2 s[10:11], s[0:1], 0
    s_load_dwordx2 s[12:13], s[0:1], 88
    v_lshrrev_b32 v2, 6, v0
    v_and_b32 v6, 63, v0
    v_lshlrev_b32 v1, 4, v6
    v_readfirstlane_b32 s3, v2
    v_and_b32 v8, 15, v6
    v_lshrrev_b32 v9, 4, v6          ; g
    s_and_b32 s4, s2, 7              ; db
    s_lshr_b32 s5, s2, 3             ; tb
    s_waitcnt lgkmcnt(0)
    ''')
    srd(a, 40, 8, WS_BYTES)
    srd(a, 44, 10, 2048 * 512 * 2)
    srd(a, 48, 12, 2048 * 512 * 2)
    ACC_A, ACC_B = 128, 192

    def phase(tag, wbase, xbase, pitch, nk, acc):
        a(f'''
        s_mul_i32 s14, s4, {4*pitch}
        s_mul_i32 s15, s3, {nk*KB}
        s_add_u32 s14, s14, s15
        s_add_u32 s14, s14, {wbase}
        s_mul_i32 s16, s5, {4*pitch}
        s_add_u32 s16, s16, s15
        s_add_u32 s16, s16, {xbase}
        ''')
        for i in range(4):
            a(f's_add_u32 s{20+i}, s14, {i*pitch}')
            a(f's_add_u32 s{24+i}, s16, {i*pitch}')

        def loads(setn, koff):
            b = 32 + setn * 32
            for i in range(8):
                a(f'buffer_load_dwordx4 v[{b+i*4}:{b+i*4+3}], v1, s[40:43], s{20+i} offen offset:{koff}')

        def mf(setn, first):
            b = 32 + setn * 32
            for i in range(4):
                for j in range(4):
                    c = acc + (i * 4 + j) * 4
                    a(f'v_mfma_f32_16x16x32_bf16 v[{c}:{c+3}], v[{b+i*4}:{b+i*4+3}], v[{b+16+j*4}:{b+16+j*4+3}], v[{c}:{c+3}]')

        for r in range(64):
            a(f'v_mov_b32 v{acc+r}, 0')
        loads(0, 0)
        a(f's_mov_b32 s17, {nk//2}')
        a.label(f'L_g2_{tag}_loop')
        loads(1, 1024)
        a('s_waitcnt vmcnt(8)')
        mf(0, False)
        for i in range(8):
            a(f's_add_u32 s{20+i}, s{20+i}, 2048')
        loads(0, 0)
        a('s_waitcnt vmcnt(8)')
        mf(1, False)
        a(f'''
        s_sub_u32 s17, s17, 1
        s_cmp_lg_u32 s17, 0
        s_cbranch_scc1 L_g2_{tag}_loop
        s_waitcnt vmcnt(0)
        ''')

    phase('o', WO, OF, 128 * KB, 32, ACC_A)
    phase('h', WD, HF, 56 * KB, 14, ACC_B)
    a('''
    s_nop 7
    s_nop 1
    s_lshl_b32 s14, s3, 15
    v_add_u32 v4, s14, v1
    ''')
    for t in range(32):
        a(f'ds_write_b128 v4, v[{128+t*4}:{131+t*4}] offset:{t*1024}')
    a('''
    s_waitcnt lgkmcnt(0)
    s_barrier
    s_lshl_b32 s14, s3, 12           ; tiles 4w..4w+3
    v_add_u32 v4, s14, v1
    v_add_u32 v5, 0x10000, v4
    ''')
    a('''
    s_lshl_b32 s14, s5, 16
    s_lshl_b32 s15, s4, 7            ; db*64*2
    s_add_u32 s14, s14, s15
    s_lshl_b32 s15, s3, 5            ; w*16*2
    s_add_u32 s14, s14, s15
    v_lshlrev_b32 v7, 10, v8
    v_lshl_add_u32 v7, v9, 3, v7
    v_add_u32 v7, s14, v7
    ''')
    for j in range(4):
        a(f's_mov_b32 s15, {j*16*1024}')
        a(f'buffer_load_dwordx2 v[{16+j*2}:{17+j*2}], v7, s[44:47], s15 offen')
    for part in range(2):
        for j in range(4):
            for w in range(4):
                off = w * 32 * KB + part * 16 * KB + j * 1024
                addr = 'v4' if off < 65536 else 'v5'
                off %= 65536
                r = 32 + ((part * 4 + j) * 4 + w) * 4
                a(f'ds_read_b128 v[{r}:{r+3}], {addr} offset:{off}')
    a('s_waitcnt lgkmcnt(0)')
    for part in range(2):
        for j in range(4):
            r = 32 + ((part * 4 + j) * 4) * 4
            for e in range(4):
                a(f'v_add_f32 v{r+e}, v{r+e}, v{r+4+e}')
                a(f'v_add_f32 v{r+8+e}, v{r+8+e}, v{r+12+e}')
                a(f'v_add_f32 v{r+e}, v{r+e}, v{r+8+e}')
    a('s_waitcnt vmcnt(0)')
    for j in range(4):
        ra = 32 + (j * 4) * 4
        rb = 32 + ((4 + j) * 4) * 4
        for hh in range(2):
            a(f'''
            v_cvt_pk_bf16_f32 v10, v{ra+2*hh}, v{ra+2*hh+1}
            v_cvt_pk_bf16_f32 v11, v{rb+2*hh}, v{rb+2*hh+1}
            v_lshlrev_b32 v12, 16, v10
            v_and_b32 v13, 0xffff0000, v10
            v_lshlrev_b32 v14, 16, v{16+j*2+hh}
            v_and_b32 v15, 0xffff0000, v{16+j*2+hh}
            v_add_f32 v12, v12, v14
            v_add_f32 v13, v13, v15
            v_cvt_pk_bf16_f32 v10, v12, v13
            v_lshlrev_b32 v12, 16, v10
            v_and_b32 v13, 0xffff0000, v10
            v_lshlrev_b32 v14, 16, v11
            v_and_b32 v15, 0xffff0000, v11
            v_add_f32 v12, v12, v14
            v_add_f32 v13, v13, v15
            v_cvt_pk_bf16_f32 v{24+j*2+hh}, v12, v13
            ''')
        a(f's_mov_b32 s15, {j*16*1024}')
        a(f'buffer_store_dwordx2 v[{24+j*2}:{25+j*2}], v7, s[48:51], s15 offen')
    a.label('L_g2_done')
    a('s_endpgm')
    return kernel_desc(name, 256, 56)


def gemm2_body(a, LD=''):
    ACC_A, ACC_B = 128, 192

    def phase(tag, wbase, xbase, pitch, nk, acc):
        a(f'''
        s_mul_i32 s14, s4, {4*pitch}
        s_mul_i32 s15, s3, {nk*KB}
        s_add_u32 s14, s14, s15
        s_add_u32 s14, s14, {wbase}
        s_mul_i32 s16, s5, {4*pitch}
        s_add_u32 s16, s16, s15
        s_add_u32 s16, s16, {xbase}
        ''')
        for i in range(4):
            a(f's_add_u32 s{20+i}, s14, {i*pitch}')
            a(f's_add_u32 s{24+i}, s16, {i*pitch}')

        def loads(setn, koff):
            b = 32 + setn * 32
            for i in range(8):
                a(f'buffer_load_dwordx4 v[{b+i*4}:{b+i*4+3}], v1, s[40:43], s{20+i} offen offset:{koff} {LD if i >= 4 else ""}')

        def mf(setn, first):
            b = 32 + setn * 32
            for i in range(4):
                for j in range(4):
                    c = acc + (i * 4 + j) * 4
                    a(f'v_mfma_f32_16x16x32_bf16 v[{c}:{c+3}], v[{b+i*4}:{b+i*4+3}], v[{b+16+j*4}:{b+16+j*4+3}], v[{c}:{c+3}]')

        for r in range(64):
            a(f'v_mov_b32 v{acc+r}, 0')
        loads(0, 0)
        a(f's_mov_b32 s17, {nk//2}')
        a.label(f'L_g2_{tag}_loop')
        loads(1, 1024)
        a('s_waitcnt vmcnt(8)')
        mf(0, False)
        for i in range(8):
            a(f's_add_u32 s{20+i}, s{20+i}, 2048')
        loads(0, 0)
        a('s_waitcnt vmcnt(8)')
        mf(1, False)
        a(f'''
        s_sub_u32 s17, s17, 1
        s_cmp_lg_u32 s17, 0
        s_cbranch_scc1 L_g2_{tag}_loop
        s_waitcnt vmcnt(0)
        ''')

    phase('o', WO, OF, 128 * KB, 32, ACC_A)
    phase('h', WD, HF, 56 * KB, 14, ACC_B)
    a('''
    s_nop 7
    s_nop 1
    s_lshl_b32 s14, s3, 15
    v_add_u32 v4, s14, v1
    ''')
    for t in range(32):
        a(f'ds_write_b128 v4, v[{128+t*4}:{131+t*4}] offset:{t*1024}')
    a('''
    s_waitcnt lgkmcnt(0)
    s_barrier
    s_lshl_b32 s14, s3, 12           ; tiles 4w..4w+3
    v_add_u32 v4, s14, v1
    v_add_u32 v5, 0x10000, v4
    ''')
    a('''
    s_lshl_b32 s14, s5, 16
    s_lshl_b32 s15, s4, 7            ; db*64*2
    s_add_u32 s14, s14, s15
    s_lshl_b32 s15, s3, 5            ; w*16*2
    s_add_u32 s14, s14, s15
    v_lshlrev_b32 v7, 10, v8
    v_lshl_add_u32 v7, v9, 3, v7
    v_add_u32 v7, s14, v7
    ''')
    for j in range(4):
        a(f's_mov_b32 s15, {j*16*1024}')
        a(f'buffer_load_dwordx2 v[{16+j*2}:{17+j*2}], v7, s[84:87], s15 offen')
    for part in range(2):
        for j in range(4):
            for w in range(4):
                off = w * 32 * KB + part * 16 * KB + j * 1024
                addr = 'v4' if off < 65536 else 'v5'
                off %= 65536
                r = 32 + ((part * 4 + j) * 4 + w) * 4
                a(f'ds_read_b128 v[{r}:{r+3}], {addr} offset:{off}')
    a('s_waitcnt lgkmcnt(0)')
    for part in range(2):
        for j in range(4):
            r = 32 + ((part * 4 + j) * 4) * 4
            for e in range(4):
                a(f'v_add_f32 v{r+e}, v{r+e}, v{r+4+e}')
                a(f'v_add_f32 v{r+8+e}, v{r+8+e}, v{r+12+e}')
                a(f'v_add_f32 v{r+e}, v{r+e}, v{r+8+e}')
    a('s_waitcnt vmcnt(0)')
    for j in range(4):
        ra = 32 + (j * 4) * 4
        rb = 32 + ((4 + j) * 4) * 4
        for hh in range(2):
            a(f'''
            v_cvt_pk_bf16_f32 v10, v{ra+2*hh}, v{ra+2*hh+1}
            v_cvt_pk_bf16_f32 v11, v{rb+2*hh}, v{rb+2*hh+1}
            v_lshlrev_b32 v12, 16, v10
            v_and_b32 v13, 0xffff0000, v10
            v_lshlrev_b32 v14, 16, v{16+j*2+hh}
            v_and_b32 v15, 0xffff0000, v{16+j*2+hh}
            v_add_f32 v12, v12, v14
            v_add_f32 v13, v13, v15
            v_cvt_pk_bf16_f32 v10, v12, v13
            v_lshlrev_b32 v12, 16, v10
            v_and_b32 v13, 0xffff0000, v10
            v_lshlrev_b32 v14, 16, v11
            v_and_b32 v15, 0xffff0000, v11
            v_add_f32 v12, v12, v14
            v_add_f32 v13, v13, v15
            v_cvt_pk_bf16_f32 v{24+j*2+hh}, v12, v13
            ''')
        a(f's_mov_b32 s15, {j*16*1024}')
        a(f'buffer_store_dwordx2 v[{24+j*2}:{25+j*2}], v7, s[88:91], s15 offen')
```

```python
from common import *

PREP_WGS = 713


def gen_prep(a):
    name = 'prep_kernel'
    kernel_header(a, name)
    a(f'''
    s_cmp_ge_u32 s2, {PREP_WGS}
    s_cbranch_scc1 L_prep_done
    s_load_dwordx4 s[4:7], s[0:1], 0
    s_load_dwordx2 s[8:9], s[0:1], 104
    s_load_dwordx8 s[24:31], s[0:1], 16
    s_load_dwordx4 s[32:35], s[0:1], 64
    s_load_dwordx2 s[36:37], s[0:1], 80
    v_lshrrev_b32 v1, 6, v0
    v_and_b32 v2, 63, v0
    v_and_b32 v3, 15, v0
    v_readfirstlane_b32 s3, v1
    v_lshrrev_b32 v4, 4, v2
    v_lshlrev_b32 v5, 4, v2
    s_waitcnt lgkmcnt(0)
    ''')
    srd(a, 40, 8, WS_BYTES)
    a('''
    s_cmp_lt_u32 s2, 32
    s_cbranch_scc1 L_prep_ln
    s_cmp_eq_u32 s2, 712
    s_cbranch_scc1 L_prep_misc
    s_sub_u32 s20, s2, 32
    s_lshl_b32 s20, s20, 2
    s_add_u32 s20, s20, s3
    s_cmp_lt_u32 s20, 1536
    s_cbranch_scc1 L_prep_wqkv
    s_cmp_lt_u32 s20, 1984
    s_cbranch_scc1 L_prep_wgu
    s_cmp_lt_u32 s20, 2496
    s_cbranch_scc1 L_prep_wo
    ''')
    a(f'''
    s_sub_u32 s21, s20, 2496
    s_mul_i32 s22, s21, 9363
    s_lshr_b32 s22, s22, 16
    s_mul_i32 s23, s22, 7
    s_sub_u32 s23, s21, s23          ; kth
    s_mov_b32 s12, s36
    s_and_b32 s13, s37, 0xffff
    s_mov_b32 s14, {1792*512*2}
    s_mov_b32 s16, 1024
    s_lshl_b32 s17, s22, 5
    s_lshl_b32 s18, s23, 3           ; kt0
    s_mul_i32 s19, s22, 56
    s_add_u32 s19, s19, s18
    s_lshl_b32 s19, s19, 10
    s_add_u32 s19, s19, {WD}
    s_branch L_prep_wbody
    ''')
    a.label('L_prep_wo')
    a(f'''
    s_sub_u32 s21, s20, 1984
    s_lshr_b32 s22, s21, 4           ; dt
    s_and_b32 s23, s21, 15           ; kth
    s_mov_b32 s12, s30
    s_and_b32 s13, s31, 0xffff
    s_mov_b32 s14, {4096*512*2}
    s_mov_b32 s16, 1024
    s_lshl_b32 s17, s22, 5
    s_lshl_b32 s18, s23, 3
    s_lshl_b32 s19, s22, 7
    s_add_u32 s19, s19, s18
    s_lshl_b32 s19, s19, 10
    s_add_u32 s19, s19, {WO}
    s_branch L_prep_wbody
    ''')
    a.label('L_prep_wgu')
    a(f'''
    s_sub_u32 s21, s20, 1536
    s_lshr_b32 s22, s21, 1           ; nt 0..223
    s_and_b32 s23, s21, 1            ; kth
    s_lshr_b32 s44, s22, 3           ; G
    s_and_b32 s45, s22, 7            ; j
    s_cmp_lt_u32 s45, 4
    s_cselect_b32 s12, s32, s34
    s_cselect_b32 s13, s33, s35
    s_and_b32 s13, s13, 0xffff
    s_mov_b32 s14, {512*1792*2}
    s_mov_b32 s16, 3584
    s_and_b32 s45, s45, 3
    s_lshl_b32 s44, s44, 2
    s_add_u32 s44, s44, s45
    s_lshl_b32 s17, s44, 5
    s_lshl_b32 s18, s23, 3
    s_lshl_b32 s19, s22, 4
    s_add_u32 s19, s19, s18
    s_lshl_b32 s19, s19, 10
    s_add_u32 s19, s19, {WGU}
    s_branch L_prep_wbody
    ''')
    a.label('L_prep_wqkv')
    a(f'''
    s_lshr_b32 s22, s20, 1           ; nt 0..767
    s_and_b32 s23, s20, 1
    s_lshr_b32 s44, s22, 8           ; which
    s_cmp_eq_u32 s44, 0
    s_cselect_b32 s12, s24, s26
    s_cselect_b32 s13, s25, s27
    s_cmp_eq_u32 s44, 2
    s_cselect_b32 s12, s28, s12
    s_cselect_b32 s13, s29, s13
    s_and_b32 s13, s13, 0xffff
    s_mov_b32 s14, {512*4096*2}
    s_mov_b32 s16, 8192
    s_and_b32 s44, s22, 255
    s_lshl_b32 s17, s44, 5
    s_lshl_b32 s18, s23, 3
    s_lshl_b32 s19, s22, 4
    s_add_u32 s19, s19, s18
    s_lshl_b32 s19, s19, 10
    s_add_u32 s19, s19, {WQKV}
    ''')
    a.label('L_prep_wbody')
    a('''
    s_mov_b32 s15, 0x00020000
    v_lshlrev_b32 v6, 2, v4          ; 4g
    v_mul_lo_u32 v6, v6, s16
    v_lshlrev_b32 v7, 1, v3
    v_add3_u32 v6, v6, v7, s17       ; voff
    s_lshl_b32 s46, s18, 5
    s_mul_i32 s46, s46, s16
    ''')
    for kt in range(8):
        for i in range(8):
            r = kt * 32 + (i & 3) + 16 * (i >> 2)
            a(f's_mul_i32 s47, s16, {r}')
            a(f's_add_u32 s47, s47, s46')
            a(f'buffer_load_ushort v{80 + kt*8 + i}, v6, s[12:15], s47 offen')
    a('v_add_u32 v7, s19, v5')
    for kt in range(8):
        a(f's_waitcnt vmcnt({(7-kt)*8 + kt})')
        for j in range(4):
            a(f'v_lshl_or_b32 v{10+kt*4+j}, v{80+kt*8+2*j+1}, 16, v{80+kt*8+2*j}')
        a(f'buffer_store_dwordx4 v[{10+kt*4}:{13+kt*4}], v7, s[40:43], 0 offen offset:{kt*1024 % 4096}')
        if kt == 3:
            a('v_add_u32 v7, 4096, v7')
    a('s_branch L_prep_done')

    a.label('L_prep_misc')
    srd(a, 12, 6, 8192)
    a(f'''
    v_and_b32 v6, 7, v2              ; row
    v_lshlrev_b32 v6, 10, v6
    v_bfe_u32 v7, v2, 3, 2           ; g
    v_lshl_add_u32 v6, v7, 3, v6
    v_lshrrev_b32 v7, 5, v2          ; hw
    v_lshl_add_u32 v6, v7, 6, v6     ; + hw*64B
    s_lshl_b32 s20, s3, 8
    v_add_u32 v6, s20, v6
    ''')
    for i in range(2):
        a(f'buffer_load_dwordx2 v[{10+i*4}:{11+i*4}], v6, s[12:15], 0 offen offset:{i*128}')
        a(f'buffer_load_dwordx2 v[{12+i*4}:{13+i*4}], v6, s[12:15], 0 offen offset:{i*128+32}')
    a(f'''
    s_lshl_b32 s20, s3, 11
    s_add_u32 s20, s20, {MEMF}
    v_add_u32 v7, s20, v5
    v_mov_b32 v30, -1
    v_mov_b32 v31, -1
    v_mov_b32 v32, -1
    v_mov_b32 v33, -1
    v_lshlrev_b32 v9, 5, v0
    v_add_u32 v9, {MEMF + 8192}, v9
    buffer_store_dwordx4 v[30:33], v9, s[40:43], 0 offen
    buffer_store_dwordx4 v[30:33], v9, s[40:43], 0 offen offset:16
    v_mov_b32 v34, 0
    v_mov_b32 v35, 0
    v_mov_b32 v36, 0
    v_mov_b32 v37, 0
    v_lshlrev_b32 v9, 5, v0
    v_add_u32 v9, {FLAGS}, v9
    buffer_store_dwordx4 v[34:37], v9, s[40:43], 0 offen
    buffer_store_dwordx4 v[34:37], v9, s[40:43], 0 offen offset:16
    s_waitcnt vmcnt(4)
    ''')
    for i in range(2):
        a(f'buffer_store_dwordx4 v[{10+i*4}:{13+i*4}], v7, s[40:43], 0 offen offset:{i*1024}')
    a('s_branch L_prep_done')

    a.label('L_prep_ln')
    srd(a, 12, 4, 2048 * 512 * 2)
    a(f'''
    v_mov_b32 v30, -1
    v_mov_b32 v31, -1
    v_mov_b32 v32, -1
    v_mov_b32 v33, -1
    s_lshl_b32 s20, s2, 15
    s_add_u32 s20, s20, {PART}
    v_lshlrev_b32 v9, 4, v0
    ''')
    for i in range(8):
        a(f's_add_u32 s21, s20, {i*4096}')
        a(f'buffer_store_dwordx4 v[30:33], v9, s[40:43], s21 offen')
    a('''
    s_lshl_b32 s20, s2, 2
    s_add_u32 s20, s20, s3           ; tt
    s_lshl_b32 s21, s20, 14
    v_lshlrev_b32 v6, 10, v3
    v_lshl_add_u32 v6, v4, 3, v6
    v_add_u32 v6, s21, v6
    ''')
    for kt in range(16):
        a(f'buffer_load_dwordx2 v[{10+kt*4}:{11+kt*4}], v6, s[12:15], 0 offen offset:{kt*64}')
        a(f'buffer_load_dwordx2 v[{12+kt*4}:{13+kt*4}], v6, s[12:15], 0 offen offset:{kt*64+32}')
    a('''
    v_xor_b32 v7, 16, v2
    v_lshlrev_b32 v7, 2, v7
    v_xor_b32 v8, 32, v2
    v_lshlrev_b32 v8, 2, v8
    s_waitcnt vmcnt(0)
    ''')
    F = 80
    for j in range(64):
        a(f'v_lshlrev_b32 v{F+2*j}, 16, v{10+j}')
        a(f'v_and_b32 v{F+2*j+1}, 0xffff0000, v{10+j}')
    a(f'v_add_f32 v74, v{F}, v{F+1}')
    a(f'v_add_f32 v75, v{F+2}, v{F+3}')
    for j in range(4, 128, 2):
        a(f'v_add_f32 v74, v74, v{F+j}')
        a(f'v_add_f32 v75, v75, v{F+j+1}')
    a('v_add_f32 v74, v74, v75')

    def xreduce(reg):
        a(f'''
        ds_bpermute_b32 v76, v7, v{reg}
        s_waitcnt lgkmcnt(0)
        v_add_f32 v{reg}, v{reg}, v76
        ds_bpermute_b32 v76, v8, v{reg}
        s_waitcnt lgkmcnt(0)
        v_add_f32 v{reg}, v{reg}, v76
        ''')
    xreduce(74)
    a('v_mul_f32 v74, 0x3b000000, v74')
    a('v_mov_b32 v75, 0')
    a('v_mov_b32 v77, 0')
    for j in range(0, 128, 2):
        a(f'v_sub_f32 v78, v{F+j}, v74')
        a(f'v_sub_f32 v79, v{F+j+1}, v74')
        a(f'v_fmac_f32 v75, v78, v78')
        a(f'v_fmac_f32 v77, v79, v79')
    a('v_add_f32 v75, v75, v77')
    xreduce(75)
    a('''
    v_mul_f32 v75, 0x3b000000, v75   ; var
    v_cvt_pk_bf16_f32 v76, v74, v75
    v_lshlrev_b32 v74, 16, v76       ; m_bf
    v_and_b32 v75, 0xffff0000, v76   ; var_bf
    v_add_f32 v75, 0x3727c5ac, v75   ; + 1e-5
    v_cvt_pk_bf16_f32 v76, v75, v75
    v_lshlrev_b32 v75, 16, v76
    v_sqrt_f32 v75, v75
    s_nop 0
    v_cvt_pk_bf16_f32 v76, v75, v75
    v_lshlrev_b32 v75, 16, v76
    v_rcp_f32 v75, v75
    s_nop 0
    ''')
    for j in range(64):
        a(f'''
        v_sub_f32 v78, v{F+2*j}, v74
        v_sub_f32 v79, v{F+2*j+1}, v74
        v_cvt_pk_bf16_f32 v76, v78, v79
        v_lshlrev_b32 v78, 16, v76
        v_and_b32 v79, 0xffff0000, v76
        v_mul_f32 v78, v78, v75
        v_mul_f32 v79, v79, v75
        v_cvt_pk_bf16_f32 v{10+j}, v78, v79
        ''')
    a(f'''
    s_lshl_b32 s21, s20, 14
    v_add_u32 v7, s21, v5
    ''')
    for kt in range(16):
        a(f'buffer_store_dwordx4 v[{10+kt*4}:{13+kt*4}], v7, s[40:43], 0 offen offset:{(kt%4)*1024}')
        if kt % 4 == 3:
            a('v_add_u32 v7, 4096, v7')
    a.label('L_prep_done')
    a('s_endpgm')
    return kernel_desc(name, 208, 48)
```

```python
from common import *
import os
import k_gemm1, k_attn, k_gemm2, k_gemm2b
NG2 = 32 // k_gemm2b.ND

TILEF = FLAGS
CHF = FLAGS + 4096
ATC = FLAGS + 4352
NTASK = 992 + 32 * (16 + NG2)
CO = 'sc0 sc1'

CH_WGS = 256
SCR = 128 * KB
OFR = 134 * KB
MEML = 136 * KB
ROLE = 144 * KB
CH_LDS = 145 * KB
SPIN = 1 << 20
STAMP = int(os.environ.get('STAMP', '0'))


class LdsQ:
    def __init__(self, a):
        self.a = a
        self.order = []
        self.done = -1

    def issue(self, tag, text):
        self.a(text)
        self.order.append(tag)

    def need(self, tag):
        i = self.order.index(tag)
        if i <= self.done:
            return
        n = len(self.order) - 1 - i
        self.a(f's_waitcnt lgkmcnt({min(n, 15)})')
        self.done = i


def gen_chain(a):
    def stamp(i):
        if STAMP:
            a(f'''
            s_memtime s[96:97]
            s_waitcnt lgkmcnt(0)
            s_mov_b32 s{80+i}, s96
            ''')

    name = 'chain_kernel'
    kernel_header(a, name)
    a(f'''
    s_cmp_ge_u32 s2, {CH_WGS}
    s_cbranch_scc1 L_ch_done
    s_load_dwordx2 s[8:9], s[0:1], 104
    s_load_dwordx2 s[10:11], s[0:1], 96
    v_lshrrev_b32 v2, 6, v0
    v_and_b32 v6, 63, v0             ; lane
    v_lshlrev_b32 v1, 4, v6          ; lane*16
    v_readfirstlane_b32 s3, v2       ; wave
    v_lshlrev_b32 v3, 3, v6          ; lane*8
    s_waitcnt lgkmcnt(0)
    ''')
    srd(a, 40, 8, WS_BYTES)
    srd(a, 44, 10, 256)
    a(f'''
    s_cmp_lg_u32 s3, 0
    s_cbranch_scc1 L_ch_role_wait
    s_getreg_b32 s12, hwreg(HW_REG_XCC_ID)
    s_and_b32 s12, s12, 7
    s_mov_b64 exec, 1
    v_mov_b32 v10, 1
    s_lshl_b32 s13, s12, 2
    v_mov_b32 v11, s13
    v_mov_b32 v12, 1
    v_mov_b32 v13, 32
    v_mov_b32 v16, 36
    buffer_atomic_add v10, v11, s[44:47], 0 offen sc0 sc1
    buffer_atomic_add v12, v13, s[44:47], 0 offen sc0 sc1
    s_waitcnt vmcnt(0)
    v_readfirstlane_b32 s13, v10
    v_readfirstlane_b32 s14, v12
    s_add_u32 s15, s12, 1
    s_cmp_lg_u32 s13, 31
    s_cbranch_scc1 L_ch_role_poll
    v_mov_b32 v14, s15
    v_mov_b32 v15, 0
    buffer_atomic_cmpswap v[14:15], v16, s[44:47], 0 offen sc1
    s_waitcnt vmcnt(0)
    ''')
    a.label('L_ch_role_poll')
    a(f's_mov_b32 s19, {SPIN}')
    a.label('L_ch_role_loop')
    a(f'''
    buffer_load_dwordx2 v[18:19], v13, s[44:47], 0 offen sc0 sc1
    s_waitcnt vmcnt(0)
    v_readfirstlane_b32 s16, v18     ; count
    v_readfirstlane_b32 s17, v19     ; winner
    s_cmp_lg_u32 s17, 0
    s_cbranch_scc1 L_ch_role_dec
    s_sub_u32 s19, s19, 1
    s_cmp_eq_u32 s19, 0
    s_cbranch_scc1 L_ch_role_dec
    s_cmp_lt_u32 s16, {CH_WGS}
    s_cbranch_scc1 L_ch_role_loop
    v_mov_b32 v14, 100
    v_mov_b32 v15, 0
    buffer_atomic_cmpswap v[14:15], v16, s[44:47], 0 offen sc1
    s_waitcnt vmcnt(0)
    s_branch L_ch_role_loop
    ''')
    a.label('L_ch_role_dec')
    a(f'''
    s_mov_b32 s18, 0xffff
    s_cmp_eq_u32 s17, 100
    s_cbranch_scc0 L_ch_role_fast
    s_or_b32 s20, s14, 0x100
    s_cmp_lt_u32 s14, 32
    s_cselect_b32 s18, s20, s18
    s_branch L_ch_role_wr
    ''')
    a.label('L_ch_role_fast')
    a('''
    s_cmp_lg_u32 s17, s15
    s_cbranch_scc1 L_ch_role_wr
    s_cmp_lt_u32 s13, 32
    s_cselect_b32 s18, s13, s18
    ''')
    a.label('L_ch_role_wr')
    a(f'''
    v_mov_b32 v10, s18
    v_mov_b32 v11, {ROLE}
    ds_write_b32 v11, v10
    s_waitcnt lgkmcnt(0)
    s_mov_b64 exec, -1
    ''')
    a.label('L_ch_role_wait')
    a(f'''
    s_barrier
    v_mov_b32 v11, {ROLE}
    ds_read_b32 v10, v11
    s_waitcnt lgkmcnt(0)
    v_readfirstlane_b32 s18, v10
    s_cmp_eq_u32 s18, 0xffff
    s_cbranch_scc1 L_w_entry
    s_and_b32 s4, s18, 0xff          ; h
    s_lshr_b32 s5, s18, 8            ; mode
    ''')
    a(f'''
    s_lshl_b32 s6, s4, 3
    s_lshl_b32 s7, s3, 1
    s_add_u32 s6, s6, s7             ; h*8+2w
    s_lshl_b32 s6, s6, 14
    s_add_u32 s6, s6, {WQKV}
    ''')
    for ti in range(4):
        which, sub = ti // 2, ti % 2
        for q4 in range(4):
            a(f's_add_u32 s7, s6, {which*256*16*KB + sub*16*KB + q4*4*KB}')
            for j in range(4):
                kt = q4 * 4 + j
                a(f'buffer_load_dwordx4 a[{ti*64+kt*4}:{ti*64+kt*4+3}], v1, s[40:43], s7 offen offset:{j*1024}')
    a(f'''
    s_lshl_b32 s13, s3, 15
    ''')
    for c in range(8):
        a(f'''
        s_add_u32 m0, s13, {c*4096}
        s_add_u32 s7, s6, {2*256*16*KB + c*4*KB}
        ''')
        for j in range(4):
            a(f'buffer_load_dwordx4 v1, s[40:43], s7 offen offset:{j*1024} lds')
    a(f'''
    s_lshl_b32 s6, s3, 20
    s_lshl_b32 s7, s4, 12            ; h*4KB
    s_add_u32 s6, s6, s7
    s_add_u32 s6, s6, {WO}
    s_lshl_b32 s7, s3, 15
    ''')
    for dtl in range(8):
        a(f's_add_u32 s12, s6, {dtl*128*KB}')
        for ks in range(4):
            r = 128 + (dtl * 4 + ks) * 4
            a(f'buffer_load_dwordx4 v[{r}:{r+3}], v1, s[40:43], s12 offen offset:{ks*1024}')
    a(f'''
    v_add_u32 v4, s7, v1
    v_and_b32 v34, 15, v6            ; col
    v_lshrrev_b32 v35, 4, v6         ; g
    v_and_b32 v36, 7, v6             ; col&7
    v_lshl_add_u32 v5, v35, 3, v36
    v_lshlrev_b32 v5, 4, v5
    v_cmp_gt_u32 s[60:61], 8, v34
    v_cmp_gt_u32 s[62:63], 32, v6    ; lanes < 32 (g<2)
    v_cmp_gt_u32 s[76:77], 8, v6     ; lanes < 8
    s_mul_i32 s12, s3, 1536
    s_add_u32 s12, s12, {SCR}
    v_add_u32 v8, s12, v5
    v_lshrrev_b32 v37, 3, v34        ; col>>3
    v_add_u32 v7, s3, v37
    v_add_u32 v7, 1, v7
    v_and_b32 v7, 3, v7              ; (w+1+hi)&3
    v_mul_u32_u24 v7, 1536, v7
    v_add3_u32 v7, v7, v5, 0
    v_add_u32 v7, {SCR}, v7
    v_add_u32 v0, s3, v37
    v_add_u32 v0, 3, v0
    v_and_b32 v0, 3, v0              ; (w+3+hi)&3
    v_mul_u32_u24 v0, 1536, v0
    v_add3_u32 v0, v0, v5, 0
    v_add_u32 v0, {SCR}, v0
    v_add_u32 v9, {OFR}, v5
    s_lshl_b32 s12, s3, 9
    v_add_u32 v2, s12, v9
    s_lshl_b32 s12, s3, 11
    s_add_u32 s12, s12, {MEML}
    v_add_u32 v38, s12, v1
    v_lshrrev_b32 v37, 3, v6
    v_lshlrev_b32 v39, 14, v37
    v_lshl_add_u32 v39, v36, 4, v39
    s_lshl_b32 s12, s3, 7
    v_add_u32 v39, s12, v39
    v_mov_b32 v24, 0
    v_mov_b32 v25, 0
    v_mov_b32 v32, 0
    v_mov_b32 v33, 0
    s_mov_b32 s50, 0
    s_lshl_b32 s12, s3, 11
    s_add_u32 s51, s12, {MEMF}
    s_add_u32 s52, s51, 8192         ; next
    s_add_u32 s59, s51, 16384
    s_lshl_b32 s53, s4, 14
    s_lshl_b32 s12, s3, 12
    s_add_u32 s53, s53, s12
    s_add_u32 s53, s53, {PART}
    s_lshl_b32 s54, s4, 9
    s_add_u32 s54, s54, {PART}
    s_lshl_b32 s12, s4, 2
    s_add_u32 s12, s12, s3
    s_lshl_b32 s12, s12, 10          ; (h*4+w) KB
    s_add_u32 s55, s12, {KF}
    s_add_u32 s57, s12, {KMF}
    s_lshl_b32 s12, s4, 3
    s_lshl_b32 s13, s3, 1
    s_add_u32 s12, s12, s13          ; h*8+2w
    s_lshl_b32 s13, s12, 10
    s_add_u32 s56, s13, {VF}
    s_lshl_b32 s13, s12, 9
    s_add_u32 s58, s13, {VMF}
    s_lshr_b32 s12, s4, 1
    s_lshl_b32 s12, s12, 9
    s_and_b32 s13, s4, 1
    s_lshl_b32 s13, s13, 3
    s_add_u32 s68, s12, s13
    s_lshl_b32 s12, s3, 7
    s_add_u32 s68, s68, s12
    s_lshl_b32 s12, s3, 11
    s_sub_u32 s68, s68, s12
    s_mov_b32 s69, 0x3e0293ee        ; scale*log2e
    ''')
    def kvwait(lbl):
        a(f'''
        s_mov_b64 exec, 3
        v_lshlrev_b32 v34, 6, v6
        s_mov_b32 s19, {SPIN}
        ''')
        a.label(lbl + '_loop')
        a(f'''
        buffer_load_dword v35, v34, s[40:43], s71 offen {CO}
        s_waitcnt vmcnt(0)
        v_cmp_eq_u32 vcc, 0, v35
        s_cbranch_vccz {lbl}_ok
        s_sleep 4
        s_sub_u32 s19, s19, 1
        s_cmp_lg_u32 s19, 0
        s_cbranch_scc1 {lbl}_loop
        s_mov_b64 exec, -1
        s_branch L_ch_done
        ''')
        a.label(lbl + '_ok')
        a('''
        s_mov_b64 exec, -1
        s_add_u32 s71, s71, 256
        ''')

    a(f'''
    s_lshr_b32 s71, s4, 1
    s_lshl_b32 s71, s71, 2
    s_add_u32 s71, s71, {TILEF + 64}
    s_lshl_b32 s72, s4, 2
    s_add_u32 s72, s72, {CHF}
    ''')
    kvwait('L_ch_kv0')
    a(f'''
    s_add_u32 s12, s55, {128*KB}
    buffer_load_dwordx4 v[10:13], v1, s[40:43], s55 offen {CO}
    buffer_load_dwordx4 v[14:17], v1, s[40:43], s12 offen {CO}
    buffer_load_dwordx4 v[20:23], v1, s[40:43], s56 offen {CO}
    buffer_load_dwordx4 v[28:31], v1, s[40:43], s56 offen offset:1024 {CO}
    s_waitcnt vmcnt(0)
    s_barrier
    s_cmp_eq_u32 s5, 0
    s_cbranch_scc0 L_ch_slow_step
    ''')

    for mode in ('fast', 'slow'):
        ld = 'sc1' if mode == 'fast' else 'sc0 sc1'
        st = '' if mode == 'fast' else 'sc0 sc1'
        L = lambda x: f'L_ch_{mode}_{x}'

        a.label(L('step'))
        stamp(0)
        def pm_issue(b):
            a(f'''
            buffer_load_dwordx4 v[{b}:{b+3}], v1, s[40:43], s51 offen {ld}
            buffer_load_dwordx4 v[{b+4}:{b+7}], v1, s[40:43], s51 offen offset:1024 {ld}
            ''')

        def pm_check(b, lbl):
            a(f'''
            v_max3_u32 v34, v{b}, v{b+1}, v{b+2}
            v_max3_u32 v35, v{b+3}, v{b+4}, v{b+5}
            v_max3_u32 v34, v34, v{b+6}, v{b+7}
            v_max_u32 v34, v34, v35
            v_cmp_eq_u32 vcc, -1, v34
            s_cbranch_vccz {lbl}
            ''')
        a(f'''
        s_mov_b32 s19, {SPIN}
        s_waitcnt vmcnt(0)
        ''')
        pm_issue(80)
        a.label(L('pm_loop'))
        pm_issue(88)
        a('s_waitcnt vmcnt(2)')
        pm_check(80, L('pm_okA'))
        pm_issue(80)
        a('s_waitcnt vmcnt(2)')
        pm_check(88, L('pm_okB'))
        a(f'''
        s_sub_u32 s19, s19, 1
        s_cmp_lg_u32 s19, 0
        s_cbranch_scc1 {L('pm_loop')}
        s_branch L_ch_done
        ''')
        a.label(L('pm_okB'))
        a(f'''
        ds_write_b128 v38, v[88:91]
        ds_write_b128 v38, v[92:95] offset:1024
        s_branch {L('pm_join')}
        ''')
        a.label(L('pm_okA'))
        a(f'''
        ds_write_b128 v38, v[80:83]
        ds_write_b128 v38, v[84:87] offset:1024
        ''')
        a.label(L('pm_join'))
        stamp(1)
        a(f'''
        s_waitcnt lgkmcnt(0)
        s_barrier
        s_cmp_lg_u32 s3, 0
        s_cbranch_scc1 {L('nocf')}
        s_mov_b64 exec, 1
        v_mov_b32 v34, s50
        v_mov_b32 v35, 0
        buffer_store_dword v34, v35, s[40:43], s72 offen {CO}
        s_mov_b64 exec, -1
        ''')
        a.label(L('nocf'))
        q = LdsQ(a)

        def rd_mem(kt):
            b = 96 + (kt % 8) * 4
            q.issue(('m', kt), f'ds_read_b128 v[{b}:{b+3}], v9 offset:{MEML - OFR + kt*512}')

        def rd_wv(kt):
            for t in range(2):
                b = 64 + ((kt % 2) * 2 + t) * 4
                q.issue(('w', kt, t), f'ds_read_b128 v[{b}:{b+3}], v4 offset:{(t*16+kt)*1024}')

        def mf_v(kt):
            m = 96 + (kt % 8) * 4
            for t in range(2):
                q.need(('w', kt, t))
                b = 64 + ((kt % 2) * 2 + t) * 4
                acc = f'v[{56+t*4}:{59+t*4}]'
                a(f'v_mfma_f32_16x16x32_bf16 {acc}, v[{m}:{m+3}], v[{b}:{b+3}], {"0" if kt == 0 else acc}')

        rd_mem(0)
        rd_wv(0)
        rd_mem(1)
        rd_wv(1)
        for kt in range(2, 8):
            rd_mem(kt)
        for kt in range(16):
            q.need(('m', kt))
            if kt == 0:
                stamp(2)
            m = 96 + (kt % 8) * 4
            for ti in range(4):
                acc = f'v[{40+ti*4}:{43+ti*4}]'
                a(f'v_mfma_f32_16x16x32_bf16 {acc}, a[{ti*64+kt*4}:{ti*64+kt*4+3}], v[{m}:{m+3}], {"0" if kt == 0 else acc}')
            if kt < 8:
                mf_v(kt)
                rd_mem(kt + 8)
                rd_wv(kt + 2)
        stamp(3)
        a('''
        s_nop 7
        v_cvt_pk_bf16_f32 v34, v40, v41
        v_cvt_pk_bf16_f32 v35, v42, v43
        v_cvt_pk_bf16_f32 v36, v44, v45
        v_cvt_pk_bf16_f32 v37, v46, v47
        v_cvt_pk_bf16_f32 v40, v48, v49
        v_cvt_pk_bf16_f32 v41, v50, v51
        v_cvt_pk_bf16_f32 v42, v52, v53
        v_cvt_pk_bf16_f32 v43, v54, v55
        s_nop 1
        v_mfma_f32_16x16x32_bf16 v[44:47], v[40:43], v[34:37], 0
        v_mfma_f32_16x16x32_bf16 v[48:51], v[10:13], v[34:37], 0
        v_mfma_f32_16x16x32_bf16 v[52:55], v[14:17], v[34:37], 0
        buffer_store_dwordx4 v[40:43], v1, s[40:43], s57 offen sc0 sc1
        ''')
        mf_v(8)
        rd_wv(10)
        a('s_nop 3')
        q.issue('t0', 'ds_write_b128 v8, v[44:47]')
        q.issue('t1', 'ds_write_b128 v8, v[48:51] offset:512')
        q.issue('t2', 'ds_write_b128 v8, v[52:55] offset:1024')
        mf_v(9)
        rd_wv(11)
        q.need('t2')
        a('s_barrier')
        stamp(4)
        for t in range(3):
            q.issue(('r1', t), f'ds_read_b128 v[{80+t*4}:{83+t*4}], v7 offset:{t*512}')
        for t in range(3):
            q.issue(('r2', t), f'ds_read_b128 v[{44+t*4}:{47+t*4}], v0 offset:{t*512}')
        a(f'''
        s_and_b32 s12, s50, 3
        s_cmp_lg_u32 s12, 3
        s_cbranch_scc1 {L('nokv')}
        s_cmp_eq_u32 s50, 63
        s_cbranch_scc1 {L('nokv')}
        ''')
        kvwait(L('kv'))
        a.label(L('nokv'))
        a(f'''
        s_add_u32 s55, s55, {256*KB}
        s_add_u32 s12, s55, {128*KB}
        buffer_load_dwordx4 v[10:13], v1, s[40:43], s55 offen {CO}
        buffer_load_dwordx4 v[14:17], v1, s[40:43], s12 offen {CO}
        v_mov_b32 v95, 0xf149f2ca
        ''')
        mf_v(10)
        rd_wv(12)
        q.need(('r2', 2))
        for i in range(12):
            a(f'v_add_f32 v{44+i}, v{44+i}, v{80+i}')
        mf_v(11)
        rd_wv(13)
        for i in range(12):
            a(f'v_add_f32_dpp v{44+i}, v{44+i}, v{44+i} row_ror:8 row_mask:0xf bank_mask:0xf')
        for i in range(4):
            a(f'v_cndmask_b32 v{44+i}, v95, v{44+i}, s[62:63]')
        mf_v(12)
        rd_wv(14)
        a('''
        v_max3_f32 v92, v48, v49, v50
        v_max3_f32 v93, v51, v52, v53
        v_max3_f32 v94, v54, v55, v44
        v_max3_f32 v92, v92, v45, v46
        v_max3_f32 v93, v93, v94, v47
        v_max_f32 v92, v92, v93
        v_mov_b32 v93, v92
        ''')
        mf_v(13)
        rd_wv(15)
        a('''
        v_permlane32_swap_b32 v92, v93
        v_max_f32 v92, v92, v93
        v_mov_b32 v93, v92
        s_nop 1
        v_permlane16_swap_b32 v92, v93
        v_max_f32 v92, v92, v93
        v_mul_f32 v92, s69, v92
        ''')
        for i in range(12):
            a(f'v_fma_f32 v{44+i}, v{44+i}, s69, -v92')
        mf_v(14)
        for i in range(12):
            a(f'v_exp_f32 v{44+i}, v{44+i}')
            if i == 5:
                mf_v(15)
        a('''
        v_mov_b32 v86, 0
        v_mov_b32 v87, 0
        v_cvt_pk_bf16_f32 v80, v44, v45
        v_cvt_pk_bf16_f32 v81, v46, v47
        v_cvt_pk_bf16_f32 v82, v48, v49
        v_cvt_pk_bf16_f32 v83, v50, v51
        v_cvt_pk_bf16_f32 v84, v52, v53
        v_cvt_pk_bf16_f32 v85, v54, v55
        v_add_f32 v92, v44, v45
        v_add_f32 v93, v46, v47
        v_add_f32 v94, v48, v49
        v_add_f32 v95, v50, v51
        v_cvt_pk_bf16_f32 v18, v56, v57
        v_cvt_pk_bf16_f32 v19, v58, v59
        v_cvt_pk_bf16_f32 v26, v60, v61
        v_cvt_pk_bf16_f32 v27, v62, v63
        v_add_f32 v92, v92, v52
        v_add_f32 v93, v93, v53
        v_mfma_f32_16x16x32_bf16 v[64:67], v[18:21], v[80:83], 0
        v_mfma_f32_16x16x32_bf16 v[68:71], v[26:29], v[80:83], 0
        v_mfma_f32_16x16x32_bf16 v[64:67], v[22:25], v[84:87], v[64:67]
        v_mfma_f32_16x16x32_bf16 v[68:71], v[30:33], v[84:87], v[68:71]
        buffer_store_dwordx2 v[18:19], v3, s[40:43], s58 offen sc0 sc1
        buffer_store_dwordx2 v[26:27], v3, s[40:43], s58 offen offset:512 sc0 sc1
        s_cmp_eq_u32 s50, 63
        s_cbranch_scc1 L_ch_fin
        v_add_f32 v94, v94, v54
        v_add_f32 v95, v95, v55
        v_add_f32 v92, v92, v93
        v_add_f32 v94, v94, v95
        v_add_f32 v92, v92, v94
        v_mov_b32 v93, v92
        s_nop 1
        v_permlane32_swap_b32 v92, v93
        v_add_f32 v92, v92, v93
        v_mov_b32 v93, v92
        s_nop 1
        v_permlane16_swap_b32 v92, v93
        v_add_f32 v92, v92, v93
        v_rcp_f32 v92, v92
        ''')
        a(f'''
        s_add_u32 s56, s56, {256*KB}
        buffer_load_dwordx4 v[20:23], v1, s[40:43], s56 offen {CO}
        buffer_load_dwordx4 v[28:31], v1, s[40:43], s56 offen offset:1024 {CO}
        ''')
        for i in range(8):
            a(f'v_mul_f32 v{64+i}, v{64+i}, v92')
        a('''
        v_cvt_pk_bf16_f32 v72, v64, v65
        v_cvt_pk_bf16_f32 v73, v66, v67
        v_cvt_pk_bf16_f32 v74, v68, v69
        v_cvt_pk_bf16_f32 v75, v70, v71
        ds_write_b128 v2, v[72:75]
        s_waitcnt lgkmcnt(0)
        s_barrier
        ''')
        stamp(5)
        for ks in range(4):
            a(f'ds_read_b128 v[{96+ks*4}:{99+ks*4}], v9 offset:{ks*512}')
        a(f'''
        v_bfe_u32 v37, v6, 3, 1
        v_lshl_add_u32 v37, v37, 9, v5
        v_mov_b32 v120, -1
        v_mov_b32 v121, -1
        v_lshlrev_b32 v122, 4, v6
        s_add_u32 s12, s59, s68
        s_mov_b64 exec, s[76:77]
        buffer_store_dwordx2 v[120:121], v122, s[40:43], s12 offen {st}
        s_mov_b64 exec, -1
        ''')
        accs = [40, 44, 48, 52, 56, 60, 112, 116]

        def pstore(pr):
            d0, d1 = accs[2 * pr], accs[2 * pr + 1]
            for r in range(4):
                a(f'v_cndmask_b32 v{d0+r}, v{d1+r}, v{d0+r}, s[60:61]')
            a(f'buffer_store_dwordx4 v[{d0}:{d0+3}], v37, s[40:43], s53 offen offset:{pr*1024} {st}')
        a('s_waitcnt lgkmcnt(0)')
        for dtl in range(8):
            acc = f'v[{accs[dtl]}:{accs[dtl]+3}]'
            for ks in range(4):
                b = 128 + (dtl * 4 + ks) * 4
                a(f'v_mfma_f32_16x16x32_bf16 {acc}, v[{b}:{b+3}], v[{96+ks*4}:{99+ks*4}], {"0" if ks == 0 else acc}')
            if dtl in (3, 5, 7):
                pstore((dtl - 3) // 2)
        a('s_nop 7')
        pstore(3)
        stamp(6)
        a(f'''
        s_add_u32 s50, s50, 1
        s_add_u32 s12, s54, {128*KB}
        s_add_u32 s13, s54, {256*KB}
        s_add_u32 s14, s54, {384*KB}
        s_mov_b32 s19, {SPIN}
        ''')
        def pr_issue(b):
            for i, so in enumerate(('s54', 's12', 's13', 's14')):
                a(f'buffer_load_dwordx4 v[{b+i*4}:{b+i*4+3}], v39, s[40:43], {so} offen {ld}')

        def pr_check(b, lbl):
            a(f'''
            v_max3_u32 v34, v{b}, v{b+1}, v{b+2}
            v_max3_u32 v35, v{b+3}, v{b+4}, v{b+5}
            v_max3_u32 v36, v{b+6}, v{b+7}, v{b+8}
            v_max3_u32 v37, v{b+9}, v{b+10}, v{b+11}
            v_max3_u32 v34, v34, v{b+12}, v{b+13}
            v_max3_u32 v35, v35, v{b+14}, v{b+15}
            v_max3_u32 v34, v34, v36, v37
            v_max_u32 v34, v34, v35
            v_cmp_eq_u32 vcc, -1, v34
            s_cbranch_vccz {lbl}
            ''')
        pr_issue(64)
        a.label(L('pr_loop'))
        pr_issue(80)
        a('s_waitcnt vmcnt(4)')
        pr_check(64, L('pr_okA'))
        pr_issue(64)
        a('s_waitcnt vmcnt(4)')
        pr_check(80, L('pr_okB'))
        a(f'''
        s_sub_u32 s19, s19, 1
        s_cmp_lg_u32 s19, 0
        s_cbranch_scc1 {L('pr_loop')}
        s_branch L_ch_done
        ''')
        a.label(L('pr_okB'))
        for r in range(4):
            a(f'v_add_f32 v{96+r}, v{80+r}, v{84+r}')
            a(f'v_add_f32 v{100+r}, v{88+r}, v{92+r}')
        a(f's_branch {L("pr_join")}')
        a.label(L('pr_okA'))
        for r in range(4):
            a(f'v_add_f32 v{96+r}, v{64+r}, v{68+r}')
            a(f'v_add_f32 v{100+r}, v{72+r}, v{76+r}')
        a.label(L('pr_join'))
        stamp(7)
        for r in range(4):
            a(f'v_add_f32 v{96+r}, v{96+r}, v{100+r}')
        a('s_nop 1')
        for r in range(4):
            a(f'v_add_f32_dpp v{96+r}, v{96+r}, v{96+r} row_ror:8 row_mask:0xf bank_mask:0xf')
        for r in range(4):
            a(f'v_mov_b32 v{100+r}, v{96+r}')
        a('s_nop 0')
        for r in range(4):
            a(f'v_permlane32_swap_b32 v{96+r}, v{100+r}')
        for r in range(4):
            a(f'v_add_f32 v{96+r}, v{96+r}, v{100+r}')
        for r in range(4):
            a(f'v_mov_b32 v{100+r}, v{96+r}')
        a('s_nop 0')
        for r in range(4):
            a(f'v_permlane16_swap_b32 v{96+r}, v{100+r}')
        for r in range(4):
            a(f'v_add_f32 v{96+r}, v{96+r}, v{100+r}')
        a(f'''
        v_cvt_pk_bf16_f32 v96, v96, v97
        v_cvt_pk_bf16_f32 v97, v98, v99
        v_lshlrev_b32 v98, 4, v6
        s_add_u32 s15, s52, s68
        s_mov_b64 exec, s[76:77]
        buffer_store_dwordx2 v[96:97], v98, s[40:43], s15 offen {st}
        s_mov_b64 exec, -1
        v_mov_b32 v100, -1
        v_mov_b32 v101, -1
        v_mov_b32 v102, -1
        v_mov_b32 v103, -1
        buffer_store_dwordx4 v[100:103], v39, s[40:43], s54 offen {st}
        buffer_store_dwordx4 v[100:103], v39, s[40:43], s12 offen {st}
        buffer_store_dwordx4 v[100:103], v39, s[40:43], s13 offen {st}
        buffer_store_dwordx4 v[100:103], v39, s[40:43], s14 offen {st}
        ''')
        stamp(8)
        if STAMP:
            a(f'''
            s_cmp_lg_u32 s3, 0
            s_cbranch_scc1 {L('nost')}
            s_lshl_b32 s12, s50, 6
            s_lshl_b32 s13, s4, 12
            s_add_u32 s12, s12, s13
            s_add_u32 s12, s12, {FLAGS + 65536}
            v_mov_b32 v35, 0
            ''')
            for i in range(9):
                a(f'v_mov_b32 v34, s{80+i}')
                a(f'buffer_store_dword v34, v35, s[40:43], s12 offen offset:{i*4}')
            a.label(L('nost'))
        a(f'''
        s_mov_b32 s12, s51
        s_mov_b32 s51, s52
        s_mov_b32 s52, s59
        s_mov_b32 s59, s12
        s_xor_b32 s53, s53, {512*KB}
        s_xor_b32 s54, s54, {512*KB}
        s_add_u32 s57, s57, {128*KB}
        s_add_u32 s58, s58, {128*KB}
        s_branch {L('step')}
        ''')
    a.label('L_ch_fin')
    a(f'''
    s_waitcnt vmcnt(0)
    s_barrier
    s_cmp_lg_u32 s3, 0
    s_cbranch_scc1 L_ch_done
    s_mov_b64 exec, 1
    v_mov_b32 v34, 64
    v_mov_b32 v35, 0
    buffer_store_dword v34, v35, s[40:43], s72 offen {CO}
    s_branch L_ch_done
    ''')
    a.label('L_w_entry')
    a('''
    s_load_dwordx2 s[10:11], s[0:1], 0
    s_load_dwordx2 s[12:13], s[0:1], 88
    s_waitcnt lgkmcnt(0)
    ''')
    srd(a, 84, 10, 2048 * 512 * 2)
    srd(a, 88, 12, 2048 * 512 * 2)
    a.label('L_w_loop')
    a(f'''
    s_barrier
    s_cmp_lg_u32 s3, 0
    s_cbranch_scc1 L_w_get
    s_mov_b64 exec, 1
    v_mov_b32 v10, 1
    v_mov_b32 v11, 64
    buffer_atomic_add v10, v11, s[44:47], 0 offen sc0 sc1
    v_mov_b32 v11, {ROLE + 4}
    s_waitcnt vmcnt(0)
    ds_write_b32 v11, v10
    s_waitcnt lgkmcnt(0)
    s_mov_b64 exec, -1
    ''')
    a.label('L_w_get')
    a(f'''
    s_barrier
    v_mov_b32 v11, {ROLE + 4}
    ds_read_b32 v10, v11
    v_and_b32 v6, 63, v0
    v_lshlrev_b32 v1, 4, v6
    v_lshlrev_b32 v3, 3, v6
    v_and_b32 v8, 15, v6
    v_lshrrev_b32 v9, 4, v6
    s_waitcnt lgkmcnt(0)
    v_readfirstlane_b32 s2, v10
    s_cmp_ge_u32 s2, {NTASK}
    s_cbranch_scc1 L_ch_done
    s_cmp_ge_u32 s2, 992
    s_cbranch_scc1 L_w_t3
    s_cmp_ge_u32 s2, 512
    s_cbranch_scc1 L_w_t2
    s_lshr_b32 s5, s2, 5
    s_and_b32 s4, s2, 31
    s_add_u32 s4, s4, 16
    s_branch L_w_g1
    ''')
    a.label('L_w_t2')
    a('''
    s_sub_u32 s6, s2, 512
    s_mul_i32 s5, s6, 2185
    s_lshr_b32 s5, s5, 16            ; tb
    s_mul_i32 s7, s5, 30
    s_sub_u32 s4, s6, s7             ; r
    s_add_u32 s7, s4, 32
    s_cmp_lt_u32 s4, 16
    s_cselect_b32 s4, s4, s7
    ''')
    a.label('L_w_g1')
    a('s_mov_b32 s92, s4')
    a('s_mov_b32 s93, s5')
    k_gemm1.gemm1_body(a, ST=CO)
    a(f'''
    s_waitcnt vmcnt(0)
    s_barrier
    s_cmp_lg_u32 s3, 0
    s_cbranch_scc1 L_w_loop
    s_lshl_b32 s6, s93, 6
    s_add_u32 s6, s6, s92
    s_lshl_b32 s6, s6, 2
    s_add_u32 s6, s6, {TILEF}
    s_mov_b64 exec, 1
    v_mov_b32 v10, 1
    v_mov_b32 v11, 0
    buffer_store_dword v10, v11, s[40:43], s6 offen {CO}
    s_mov_b64 exec, -1
    s_branch L_w_loop
    ''')

    def wpoll(lbl, nl):
        a(f'''
        s_mov_b64 exec, {(1 << nl) - 1}
        s_mov_b32 s19, {SPIN}
        ''')
        a.label(lbl + '_loop')
        a(f'''
        buffer_load_dword v12, v10, s[40:43], 0 offen {CO}
        s_waitcnt vmcnt(0)
        v_cmp_lt_u32 vcc, v12, v11
        s_cbranch_vccz {lbl}_ok
        s_sleep 16
        s_sub_u32 s19, s19, 1
        s_cmp_lg_u32 s19, 0
        s_cbranch_scc1 {lbl}_loop
        s_mov_b64 exec, -1
        s_branch L_ch_done
        ''')
        a.label(lbl + '_ok')
        a('s_mov_b64 exec, -1')

    a.label('L_w_t3')
    a(f'''
    s_sub_u32 s6, s2, 992
    s_lshr_b32 s92, s6, 5            ; sp
    s_and_b32 s7, s6, 31             ; r
    s_cmp_ge_u32 s7, 16
    s_cbranch_scc1 L_w_g2
    s_lshr_b32 s5, s7, 3
    s_lshl_b32 s6, s92, 1
    s_add_u32 s5, s5, s6             ; seg
    s_and_b32 s6, s7, 7
    s_lshl_b32 s6, s6, 2
    s_add_u32 s6, s6, s3             ; h
    s_lshr_b32 s10, s5, 2            ; tb
    s_lshl_b32 s10, s10, 6
    s_lshr_b32 s11, s6, 1
    s_add_u32 s10, s10, s11
    s_lshl_b32 s10, s10, 2
    s_add_u32 s10, s10, {TILEF}
    v_lshlrev_b32 v10, 6, v6
    v_add_u32 v10, s10, v10
    s_lshl_b32 s10, s6, 2
    s_add_u32 s10, s10, {CHF}
    v_mov_b32 v12, s10
    v_mov_b32 v11, 1
    s_add_u32 s10, s5, 1
    v_mov_b32 v13, s10
    v_cmp_eq_u32 vcc, 3, v6
    s_nop 1
    v_cndmask_b32 v10, v10, v12, vcc
    v_cndmask_b32 v11, v11, v13, vcc
    ''')
    wpoll('L_w_pa', 4)
    k_attn.attn_body(a, ST=CO, LD=CO)
    a(f'''
    s_waitcnt vmcnt(0)
    s_barrier
    s_cmp_lg_u32 s3, 0
    s_cbranch_scc1 L_w_loop
    s_lshl_b32 s6, s92, 2
    s_add_u32 s6, s6, {ATC}
    s_mov_b64 exec, 1
    v_mov_b32 v10, 1
    v_mov_b32 v11, 0
    buffer_atomic_add v10, v11, s[40:43], s6 offen sc1
    s_mov_b64 exec, -1
    s_branch L_w_loop
    ''')
    a.label('L_w_g2')
    a(f'''
    s_sub_u32 s4, s7, 16             ; db
    s_mov_b32 s5, s92                ; sp
    s_lshr_b32 s10, s92, 1
    s_lshl_b32 s10, s10, 8
    s_add_u32 s10, s10, {TILEF + 48*4}
    v_lshlrev_b32 v10, 2, v6
    v_add_u32 v10, s10, v10
    s_lshl_b32 s10, s92, 2
    s_add_u32 s10, s10, {ATC}
    v_mov_b32 v12, s10
    v_mov_b32 v11, 1
    v_mov_b32 v13, 16
    v_cmp_eq_u32 vcc, 14, v6
    s_nop 1
    v_cndmask_b32 v10, v10, v12, vcc
    v_cndmask_b32 v11, v11, v13, vcc
    ''')
    wpoll('L_w_pg', 15)
    k_gemm2b.gemm2_body(a, LD=CO)
    a('s_branch L_w_loop')
    a.label('L_ch_done')
    a('s_endpgm')
    return kernel_desc(name, 256, 100, accum=256, nfv=512)
```

```python
from common import *

ND = 2
NSET = 5


def gemm2_body(a, LD=''):
    NF = ND + 4
    npart = 2 * ND * 4

    def accr(p, i, j):
        return ((p * ND + i) * 4 + j) * 4

    for r in range(npart * 4):
        a(f'v_accvgpr_write_b32 a{r}, 0')
    steps = [(0, k) for k in range(32)] + [(1, k) for k in range(14)]
    for p, (wbase, xbase, pitch, nk) in enumerate(((WO, OF, 128 * KB, 32), (WD, HF, 56 * KB, 14))):
        a(f'''
        s_mul_i32 s14, s4, {ND*pitch}
        s_mul_i32 s15, s3, {nk*KB}
        s_add_u32 s14, s14, s15
        s_add_u32 s14, s14, {wbase}
        s_mul_i32 s16, s5, {4*pitch}
        s_add_u32 s16, s16, s15
        s_add_u32 s16, s16, {xbase}
        ''')
        for i in range(ND):
            a(f's_add_u32 s{20+p*8+i}, s14, {i*pitch}')
        for j in range(4):
            a(f's_add_u32 s{20+p*8+ND+j}, s16, {j*pitch}')

    def loads(idx):
        p, k = steps[idx]
        b = 32 + (idx % NSET) * NF * 4
        if k and k % 4 == 0:
            for f in range(NF):
                a(f's_add_u32 s{20+p*8+f}, s{20+p*8+f}, 4096')
        for f in range(NF):
            fl = LD if f >= ND else ''
            a(f'buffer_load_dwordx4 v[{b+f*4}:{b+f*4+3}], v1, s[40:43], s{20+p*8+f} offen offset:{(k%4)*1024} {fl}')

    n = len(steps)
    for idx in range(NSET - 1):
        loads(idx)
    for idx in range(n):
        if idx + NSET - 1 < n:
            loads(idx + NSET - 1)
            a(f's_waitcnt vmcnt({(NSET-1)*NF})')
        else:
            a(f's_waitcnt vmcnt({(n-1-idx)*NF})')
        p, k = steps[idx]
        b = 32 + (idx % NSET) * NF * 4
        for i in range(ND):
            for j in range(4):
                c = accr(p, i, j)
                a(f'v_mfma_f32_16x16x32_bf16 a[{c}:{c+3}], v[{b+i*4}:{b+i*4+3}], v[{b+(ND+j)*4}:{b+(ND+j)*4+3}], a[{c}:{c+3}]')
    a(f'''
    s_nop 7
    s_nop 1
    s_mul_i32 s14, s3, {npart*KB}
    v_add_u32 v4, s14, v1
    ''')
    for t in range(npart):
        a(f'ds_write_b128 v4, a[{t*4}:{t*4+3}] offset:{t*1024}')
    a(f'''
    s_lshl_b32 s14, s5, 16
    s_lshl_b32 s15, s3, 14
    s_add_u32 s14, s14, s15
    s_mul_i32 s15, s4, {ND*32}
    s_add_u32 s14, s14, s15
    v_lshlrev_b32 v7, 10, v8
    v_lshl_add_u32 v7, v9, 3, v7
    v_add_u32 v7, s14, v7
    ''')
    for i in range(ND):
        a(f'buffer_load_dwordx2 v[{16+i*2}:{17+i*2}], v7, s[84:87], 0 offen offset:{i*32}')
    a(f'''
    s_waitcnt lgkmcnt(0)
    s_barrier
    s_lshl_b32 s14, s3, 10
    v_add_u32 v4, s14, v1
    ''')
    for p in range(2):
        for i in range(ND):
            for w in range(4):
                off = w * npart * KB + ((p * ND + i) * 4) * KB
                r = 32 + ((p * ND + i) * 4 + w) * 4
                a(f'ds_read_b128 v[{r}:{r+3}], v4 offset:{off}')
    a('s_waitcnt lgkmcnt(0)')
    for p in range(2):
        for i in range(ND):
            r = 32 + ((p * ND + i) * 4) * 4
            for e in range(4):
                a(f'v_add_f32 v{r+e}, v{r+e}, v{r+4+e}')
                a(f'v_add_f32 v{r+8+e}, v{r+8+e}, v{r+12+e}')
                a(f'v_add_f32 v{r+e}, v{r+e}, v{r+8+e}')
    a('s_waitcnt vmcnt(0)')
    for i in range(ND):
        ra = 32 + (i * 4) * 4
        rb = 32 + ((ND + i) * 4) * 4
        for hh in range(2):
            a(f'''
            v_cvt_pk_bf16_f32 v10, v{ra+2*hh}, v{ra+2*hh+1}
            v_cvt_pk_bf16_f32 v11, v{rb+2*hh}, v{rb+2*hh+1}
            v_lshlrev_b32 v12, 16, v10
            v_and_b32 v13, 0xffff0000, v10
            v_lshlrev_b32 v14, 16, v{16+i*2+hh}
            v_and_b32 v15, 0xffff0000, v{16+i*2+hh}
            v_add_f32 v12, v12, v14
            v_add_f32 v13, v13, v15
            v_cvt_pk_bf16_f32 v10, v12, v13
            v_lshlrev_b32 v12, 16, v10
            v_and_b32 v13, 0xffff0000, v10
            v_lshlrev_b32 v14, 16, v11
            v_and_b32 v15, 0xffff0000, v11
            v_add_f32 v12, v12, v14
            v_add_f32 v13, v13, v15
            v_cvt_pk_bf16_f32 v{24+i*2+hh}, v12, v13
            ''')
        a(f'buffer_store_dwordx2 v[{24+i*2}:{25+i*2}], v7, s[88:91], 0 offen offset:{i*32}')
```

```python
from common import *
import os
import k_gemm1, k_attn, k_gemm2, k_gemm2b
NG2 = 32 // k_gemm2b.ND

TILEF = FLAGS
CHF = FLAGS + 4096
ATC = FLAGS + 4352
NTASK = 992 + 32 * (16 + NG2)
CO = 'sc0 sc1'

CH_WGS = 256
SCR = 128 * KB
OFR = 134 * KB
MEML = 136 * KB
ROLE = 144 * KB
CH_LDS = 145 * KB
SPIN = 1 << 20
STAMP = int(os.environ.get('STAMP', '0'))
POLLMODE = int(os.environ.get('POLLMODE', '1'))
FORCE_SLOW = int(os.environ.get('FORCE_SLOW', '0'))


class LdsQ:
    def __init__(self, a):
        self.a = a
        self.order = []
        self.done = -1

    def issue(self, tag, text):
        self.a(text)
        self.order.append(tag)

    def need(self, tag):
        i = self.order.index(tag)
        if i <= self.done:
            return
        n = len(self.order) - 1 - i
        self.a(f's_waitcnt lgkmcnt({min(n, 15)})')
        self.done = i


def gen_chain(a):
    def rstamp(i):
        if STAMP:
            a(f'''
            s_memrealtime s[96:97]
            s_waitcnt lgkmcnt(0)
            s_lshl_b32 s98, s94, 4
            s_add_u32 s98, s98, {FLAGS + 32768 + i*4}
            v_mov_b32 v34, s96
            v_mov_b32 v35, 0
            buffer_store_dword v34, v35, s[40:43], s98 offen
            ''')

    def stamp(i):
        if STAMP:
            a(f'''
            s_memtime s[96:97]
            s_waitcnt lgkmcnt(0)
            s_mov_b32 s{80+i}, s96
            ''')

    name = 'chain_kernel'
    kernel_header(a, name)
    a(f'''
    s_cmp_ge_u32 s2, {CH_WGS}
    s_cbranch_scc1 L_ch_end
    s_load_dwordx2 s[8:9], s[0:1], 104
    s_load_dwordx2 s[10:11], s[0:1], 96
    s_mov_b32 s94, s2
    v_lshrrev_b32 v2, 6, v0
    v_and_b32 v6, 63, v0             ; lane
    v_lshlrev_b32 v1, 4, v6          ; lane*16
    v_readfirstlane_b32 s3, v2       ; wave
    v_lshlrev_b32 v3, 3, v6          ; lane*8
    s_waitcnt lgkmcnt(0)
    ''')
    srd(a, 40, 8, WS_BYTES)
    srd(a, 44, 10, 256)
    rstamp(0)
    a(f'''
    s_cmp_lg_u32 s3, 0
    s_cbranch_scc1 L_ch_role_wait
    s_getreg_b32 s12, hwreg(HW_REG_XCC_ID)
    s_and_b32 s12, s12, 7
    s_mov_b64 exec, 1
    v_mov_b32 v10, 1
    s_lshl_b32 s13, s12, 2
    v_mov_b32 v11, s13
    v_mov_b32 v12, 1
    v_mov_b32 v13, 32
    v_mov_b32 v16, 36
    buffer_atomic_add v10, v11, s[44:47], 0 offen sc0 sc1
    buffer_atomic_add v12, v13, s[44:47], 0 offen sc0 sc1
    s_waitcnt vmcnt(0)
    v_readfirstlane_b32 s13, v10
    v_readfirstlane_b32 s14, v12
    s_add_u32 s15, s12, 1
    s_cmp_lg_u32 s13, {31 if not FORCE_SLOW else 9999}
    s_cbranch_scc1 L_ch_role_poll
    v_mov_b32 v14, s15
    v_mov_b32 v15, 0
    buffer_atomic_cmpswap v[14:15], v16, s[44:47], 0 offen sc1
    s_waitcnt vmcnt(0)
    ''')
    a.label('L_ch_role_poll')
    a(f's_mov_b32 s19, {SPIN}')
    a.label('L_ch_role_loop')
    a(f'''
    buffer_load_dwordx2 v[18:19], v13, s[44:47], 0 offen sc0 sc1
    s_waitcnt vmcnt(0)
    v_readfirstlane_b32 s16, v18     ; count
    v_readfirstlane_b32 s17, v19     ; winner
    s_cmp_lg_u32 s17, 0
    s_cbranch_scc1 L_ch_role_dec
    s_sub_u32 s19, s19, 1
    s_cmp_eq_u32 s19, 0
    s_cbranch_scc1 L_ch_role_dec
    s_cmp_lt_u32 s16, {CH_WGS}
    s_cbranch_scc1 L_ch_role_loop
    v_mov_b32 v14, 100
    v_mov_b32 v15, 0
    buffer_atomic_cmpswap v[14:15], v16, s[44:47], 0 offen sc1
    s_waitcnt vmcnt(0)
    s_branch L_ch_role_loop
    ''')
    a.label('L_ch_role_dec')
    a(f'''
    s_mov_b32 s18, 0xffff
    s_cmp_eq_u32 s17, 100
    s_cbranch_scc0 L_ch_role_fast
    s_or_b32 s20, s14, 0x100
    s_cmp_lt_u32 s14, 32
    s_cselect_b32 s18, s20, s18
    s_branch L_ch_role_wr
    ''')
    a.label('L_ch_role_fast')
    a('''
    s_cmp_lg_u32 s17, s15
    s_cbranch_scc1 L_ch_role_wr
    s_cmp_lt_u32 s13, 32
    s_cselect_b32 s18, s13, s18
    ''')
    a.label('L_ch_role_wr')
    a(f'''
    v_mov_b32 v10, s18
    v_mov_b32 v11, {ROLE}
    ds_write_b32 v11, v10
    s_waitcnt lgkmcnt(0)
    s_mov_b64 exec, -1
    ''')
    a.label('L_ch_role_wait')
    a(f'''
    s_barrier
    v_mov_b32 v11, {ROLE}
    ds_read_b32 v10, v11
    s_waitcnt lgkmcnt(0)
    v_readfirstlane_b32 s18, v10
    s_cmp_eq_u32 s18, 0xffff
    s_cbranch_scc1 L_w_entry
    s_and_b32 s4, s18, 0xff          ; h
    s_lshr_b32 s5, s18, 8            ; mode
    ''')
    a(f'''
    s_lshl_b32 s6, s4, 3
    s_lshl_b32 s7, s3, 1
    s_add_u32 s6, s6, s7             ; h*8+2w
    s_lshl_b32 s6, s6, 14
    s_add_u32 s6, s6, {WQKV}
    ''')
    for ti in range(4):
        which, sub = ti // 2, ti % 2
        for q4 in range(4):
            a(f's_add_u32 s7, s6, {which*256*16*KB + sub*16*KB + q4*4*KB}')
            for j in range(4):
                kt = q4 * 4 + j
                a(f'buffer_load_dwordx4 a[{ti*64+kt*4}:{ti*64+kt*4+3}], v1, s[40:43], s7 offen offset:{j*1024}')
    a(f'''
    s_lshl_b32 s13, s3, 15
    ''')
    for c in range(8):
        a(f'''
        s_add_u32 m0, s13, {c*4096}
        s_add_u32 s7, s6, {2*256*16*KB + c*4*KB}
        ''')
        for j in range(4):
            a(f'buffer_load_dwordx4 v1, s[40:43], s7 offen offset:{j*1024} lds')
    a(f'''
    s_lshl_b32 s6, s3, 20
    s_lshl_b32 s7, s4, 12            ; h*4KB
    s_add_u32 s6, s6, s7
    s_add_u32 s6, s6, {WO}
    s_lshl_b32 s7, s3, 15
    ''')
    for dtl in range(8):
        a(f's_add_u32 s12, s6, {dtl*128*KB}')
        for ks in range(4):
            r = 128 + (dtl * 4 + ks) * 4
            a(f'buffer_load_dwordx4 v[{r}:{r+3}], v1, s[40:43], s12 offen offset:{ks*1024}')
    a(f'''
    v_add_u32 v4, s7, v1
    v_and_b32 v34, 15, v6            ; col
    v_lshrrev_b32 v35, 4, v6         ; g
    v_and_b32 v36, 7, v6             ; col&7
    v_lshl_add_u32 v5, v35, 3, v36
    v_lshlrev_b32 v5, 4, v5
    v_cmp_gt_u32 s[60:61], 8, v34
    v_cmp_gt_u32 s[62:63], 32, v6    ; lanes < 32 (g<2)
    v_cmp_gt_u32 s[76:77], 8, v6     ; lanes < 8
    s_mul_i32 s12, s3, 1536
    s_add_u32 s12, s12, {SCR}
    v_add_u32 v8, s12, v5
    v_lshrrev_b32 v37, 3, v34        ; col>>3
    v_add_u32 v7, s3, v37
    v_add_u32 v7, 1, v7
    v_and_b32 v7, 3, v7              ; (w+1+hi)&3
    v_mul_u32_u24 v7, 1536, v7
    v_add3_u32 v7, v7, v5, 0
    v_add_u32 v7, {SCR}, v7
    v_add_u32 v0, s3, v37
    v_add_u32 v0, 3, v0
    v_and_b32 v0, 3, v0              ; (w+3+hi)&3
    v_mul_u32_u24 v0, 1536, v0
    v_add3_u32 v0, v0, v5, 0
    v_add_u32 v0, {SCR}, v0
    v_add_u32 v9, {OFR}, v5
    s_lshl_b32 s12, s3, 9
    v_add_u32 v2, s12, v9
    s_lshl_b32 s12, s3, 11
    s_add_u32 s12, s12, {MEML}
    v_add_u32 v38, s12, v1
    v_lshrrev_b32 v37, 3, v6
    v_lshlrev_b32 v39, 14, v37
    v_lshl_add_u32 v39, v36, 4, v39
    s_lshl_b32 s12, s3, 7
    v_add_u32 v39, s12, v39
    v_mov_b32 v24, 0
    v_mov_b32 v25, 0
    v_mov_b32 v32, 0
    v_mov_b32 v33, 0
    s_mov_b32 s50, 0
    s_lshl_b32 s12, s3, 11
    s_add_u32 s51, s12, {MEMF}
    s_add_u32 s52, s51, 8192         ; next
    s_add_u32 s59, s51, 16384
    s_lshl_b32 s53, s4, 14
    s_lshl_b32 s12, s3, 12
    s_add_u32 s53, s53, s12
    s_add_u32 s53, s53, {PART}
    s_lshl_b32 s54, s4, 9
    s_add_u32 s54, s54, {PART}
    s_lshl_b32 s12, s4, 2
    s_add_u32 s12, s12, s3
    s_lshl_b32 s12, s12, 10          ; (h*4+w) KB
    s_add_u32 s55, s12, {KF}
    s_add_u32 s57, s12, {KMF}
    s_lshl_b32 s12, s4, 3
    s_lshl_b32 s13, s3, 1
    s_add_u32 s12, s12, s13          ; h*8+2w
    s_lshl_b32 s13, s12, 10
    s_add_u32 s56, s13, {VF}
    s_lshl_b32 s13, s12, 9
    s_add_u32 s58, s13, {VMF}
    s_lshr_b32 s12, s4, 1
    s_lshl_b32 s12, s12, 9
    s_and_b32 s13, s4, 1
    s_lshl_b32 s13, s13, 3
    s_add_u32 s68, s12, s13
    s_lshl_b32 s12, s3, 7
    s_add_u32 s68, s68, s12
    s_lshl_b32 s12, s3, 11
    s_sub_u32 s68, s68, s12
    s_mov_b32 s69, 0x3e0293ee        ; scale*log2e
    ''')
    def kvwait(lbl):
        a(f'''
        s_mov_b64 exec, 3
        v_lshlrev_b32 v34, 6, v6
        s_mov_b32 s19, {SPIN}
        ''')
        a.label(lbl + '_loop')
        a(f'''
        buffer_load_dword v35, v34, s[40:43], s71 offen {CO}
        s_waitcnt vmcnt(0)
        v_cmp_eq_u32 vcc, 0, v35
        s_cbranch_vccz {lbl}_ok
        s_sleep 4
        s_sub_u32 s19, s19, 1
        s_cmp_lg_u32 s19, 0
        s_cbranch_scc1 {lbl}_loop
        s_mov_b64 exec, -1
        s_branch L_ch_done
        ''')
        a.label(lbl + '_ok')
        a('''
        s_mov_b64 exec, -1
        s_add_u32 s71, s71, 256
        ''')

    a(f'''
    s_lshr_b32 s71, s4, 1
    s_lshl_b32 s71, s71, 2
    s_add_u32 s71, s71, {TILEF + 64}
    s_lshl_b32 s72, s4, 2
    s_add_u32 s72, s72, {CHF}
    ''')
    rstamp(1)
    kvwait('L_ch_kv0')
    rstamp(2)
    a(f'''
    s_add_u32 s12, s55, {128*KB}
    buffer_load_dwordx4 v[10:13], v1, s[40:43], s55 offen {CO}
    buffer_load_dwordx4 v[14:17], v1, s[40:43], s12 offen {CO}
    buffer_load_dwordx4 v[20:23], v1, s[40:43], s56 offen {CO}
    buffer_load_dwordx4 v[28:31], v1, s[40:43], s56 offen offset:1024 {CO}
    s_waitcnt vmcnt(0)
    s_barrier
    s_cmp_eq_u32 s5, 0
    s_cbranch_scc0 L_ch_slow_step
    ''')

    for mode in ('fast', 'slow'):
        ld = os.environ.get('FASTLD', 'sc1') if mode == 'fast' else 'sc0 sc1'
        st = os.environ.get('FASTST', '') if mode == 'fast' else 'sc0 sc1'
        L = lambda x: f'L_ch_{mode}_{x}'

        a.label(L('step'))
        stamp(0)
        def pm_issue(b):
            a(f'''
            buffer_load_dwordx4 v[{b}:{b+3}], v1, s[40:43], s51 offen {ld}
            buffer_load_dwordx4 v[{b+4}:{b+7}], v1, s[40:43], s51 offen offset:1024 {ld}
            ''')

        def pm_check(b, lbl):
            a(f'''
            v_max3_u32 v34, v{b}, v{b+1}, v{b+2}
            v_max3_u32 v35, v{b+3}, v{b+4}, v{b+5}
            v_max3_u32 v34, v34, v{b+6}, v{b+7}
            v_max_u32 v34, v34, v35
            v_cmp_eq_u32 vcc, -1, v34
            s_cbranch_vccz {lbl}
            ''')
        a(f'''
        s_mov_b32 s19, {SPIN}
        s_waitcnt vmcnt(0)
        ''')
        if POLLMODE == 0:
            pm_issue(80)
            a.label(L('pm_loop'))
            pm_issue(88)
            a('s_waitcnt vmcnt(2)')
            pm_check(80, L('pm_okA'))
            pm_issue(80)
            a('s_waitcnt vmcnt(2)')
            pm_check(88, L('pm_okB'))
        else:
            a.label(L('pm_loop'))
            pm_issue(80)
            a('s_waitcnt vmcnt(0)')
            pm_check(80, L('pm_okA'))
            if POLLMODE >= 2:
                a(f's_sleep {POLLMODE-1}')
        a(f'''
        s_sub_u32 s19, s19, 1
        s_cmp_lg_u32 s19, 0
        s_cbranch_scc1 {L('pm_loop')}
        s_branch L_ch_done
        ''')
        a.label(L('pm_okB'))
        a(f'''
        ds_write_b128 v38, v[88:91]
        ds_write_b128 v38, v[92:95] offset:1024
        s_branch {L('pm_join')}
        ''')
        a.label(L('pm_okA'))
        a(f'''
        ds_write_b128 v38, v[80:83]
        ds_write_b128 v38, v[84:87] offset:1024
        ''')
        a.label(L('pm_join'))
        stamp(1)
        a(f'''
        s_waitcnt lgkmcnt(0)
        s_barrier
        s_cmp_lg_u32 s3, 0
        s_cbranch_scc1 {L('nocf')}
        s_mov_b64 exec, 1
        v_mov_b32 v34, s50
        v_mov_b32 v35, 0
        buffer_store_dword v34, v35, s[40:43], s72 offen {CO}
        s_mov_b64 exec, -1
        ''')
        a.label(L('nocf'))
        q = LdsQ(a)

        def rd_mem(kt):
            b = 96 + (kt % 8) * 4
            q.issue(('m', kt), f'ds_read_b128 v[{b}:{b+3}], v9 offset:{MEML - OFR + kt*512}')

        def rd_wv(kt):
            for t in range(2):
                b = 64 + ((kt % 2) * 2 + t) * 4
                q.issue(('w', kt, t), f'ds_read_b128 v[{b}:{b+3}], v4 offset:{(t*16+kt)*1024}')

        def mf_v(kt):
            m = 96 + (kt % 8) * 4
            for t in range(2):
                q.need(('w', kt, t))
                b = 64 + ((kt % 2) * 2 + t) * 4
                acc = f'v[{56+t*4}:{59+t*4}]'
                a(f'v_mfma_f32_16x16x32_bf16 {acc}, v[{m}:{m+3}], v[{b}:{b+3}], {"0" if kt == 0 else acc}')

        rd_mem(0)
        rd_wv(0)
        rd_mem(1)
        rd_wv(1)
        for kt in range(2, 8):
            rd_mem(kt)
        for kt in range(16):
            q.need(('m', kt))
            if kt == 0:
                stamp(2)
            m = 96 + (kt % 8) * 4
            for ti in range(4):
                acc = f'v[{40+ti*4}:{43+ti*4}]'
                a(f'v_mfma_f32_16x16x32_bf16 {acc}, a[{ti*64+kt*4}:{ti*64+kt*4+3}], v[{m}:{m+3}], {"0" if kt == 0 else acc}')
            if kt < 8:
                mf_v(kt)
                rd_mem(kt + 8)
                rd_wv(kt + 2)
        stamp(3)
        a('''
        s_nop 7
        v_cvt_pk_bf16_f32 v34, v40, v41
        v_cvt_pk_bf16_f32 v35, v42, v43
        v_cvt_pk_bf16_f32 v36, v44, v45
        v_cvt_pk_bf16_f32 v37, v46, v47
        v_cvt_pk_bf16_f32 v40, v48, v49
        v_cvt_pk_bf16_f32 v41, v50, v51
        v_cvt_pk_bf16_f32 v42, v52, v53
        v_cvt_pk_bf16_f32 v43, v54, v55
        s_nop 1
        v_mfma_f32_16x16x32_bf16 v[44:47], v[40:43], v[34:37], 0
        v_mfma_f32_16x16x32_bf16 v[48:51], v[10:13], v[34:37], 0
        v_mfma_f32_16x16x32_bf16 v[52:55], v[14:17], v[34:37], 0
        buffer_store_dwordx4 v[40:43], v1, s[40:43], s57 offen sc0 sc1
        ''')
        mf_v(8)
        rd_wv(10)
        a('s_nop 3')
        q.issue('t0', 'ds_write_b128 v8, v[44:47]')
        q.issue('t1', 'ds_write_b128 v8, v[48:51] offset:512')
        q.issue('t2', 'ds_write_b128 v8, v[52:55] offset:1024')
        mf_v(9)
        rd_wv(11)
        q.need('t2')
        a('s_barrier')
        stamp(4)
        for t in range(3):
            q.issue(('r1', t), f'ds_read_b128 v[{80+t*4}:{83+t*4}], v7 offset:{t*512}')
        for t in range(3):
            q.issue(('r2', t), f'ds_read_b128 v[{44+t*4}:{47+t*4}], v0 offset:{t*512}')
        a(f'''
        s_and_b32 s12, s50, 3
        s_cmp_lg_u32 s12, 3
        s_cbranch_scc1 {L('nokv')}
        s_cmp_eq_u32 s50, 63
        s_cbranch_scc1 {L('nokv')}
        ''')
        kvwait(L('kv'))
        a.label(L('nokv'))
        a(f'''
        s_add_u32 s55, s55, {256*KB}
        s_add_u32 s12, s55, {128*KB}
        buffer_load_dwordx4 v[10:13], v1, s[40:43], s55 offen {CO}
        buffer_load_dwordx4 v[14:17], v1, s[40:43], s12 offen {CO}
        v_mov_b32 v95, 0xf149f2ca
        ''')
        mf_v(10)
        rd_wv(12)
        q.need(('r2', 2))
        for i in range(12):
            a(f'v_add_f32 v{44+i}, v{44+i}, v{80+i}')
        mf_v(11)
        rd_wv(13)
        for i in range(12):
            a(f'v_add_f32_dpp v{44+i}, v{44+i}, v{44+i} row_ror:8 row_mask:0xf bank_mask:0xf')
        for i in range(4):
            a(f'v_cndmask_b32 v{44+i}, v95, v{44+i}, s[62:63]')
        mf_v(12)
        rd_wv(14)
        a('''
        v_max3_f32 v92, v48, v49, v50
        v_max3_f32 v93, v51, v52, v53
        v_max3_f32 v94, v54, v55, v44
        v_max3_f32 v92, v92, v45, v46
        v_max3_f32 v93, v93, v94, v47
        v_max_f32 v92, v92, v93
        v_mov_b32 v93, v92
        ''')
        mf_v(13)
        rd_wv(15)
        a('''
        v_permlane32_swap_b32 v92, v93
        v_max_f32 v92, v92, v93
        v_mov_b32 v93, v92
        s_nop 1
        v_permlane16_swap_b32 v92, v93
        v_max_f32 v92, v92, v93
        v_mul_f32 v92, s69, v92
        ''')
        for i in range(12):
            a(f'v_fma_f32 v{44+i}, v{44+i}, s69, -v92')
        mf_v(14)
        for i in range(12):
            a(f'v_exp_f32 v{44+i}, v{44+i}')
            if i == 5:
                mf_v(15)
        a('''
        v_mov_b32 v86, 0
        v_mov_b32 v87, 0
        v_cvt_pk_bf16_f32 v80, v44, v45
        v_cvt_pk_bf16_f32 v81, v46, v47
        v_cvt_pk_bf16_f32 v82, v48, v49
        v_cvt_pk_bf16_f32 v83, v50, v51
        v_cvt_pk_bf16_f32 v84, v52, v53
        v_cvt_pk_bf16_f32 v85, v54, v55
        v_add_f32 v92, v44, v45
        v_add_f32 v93, v46, v47
        v_add_f32 v94, v48, v49
        v_add_f32 v95, v50, v51
        v_cvt_pk_bf16_f32 v18, v56, v57
        v_cvt_pk_bf16_f32 v19, v58, v59
        v_cvt_pk_bf16_f32 v26, v60, v61
        v_cvt_pk_bf16_f32 v27, v62, v63
        v_add_f32 v92, v92, v52
        v_add_f32 v93, v93, v53
        v_mfma_f32_16x16x32_bf16 v[64:67], v[18:21], v[80:83], 0
        v_mfma_f32_16x16x32_bf16 v[68:71], v[26:29], v[80:83], 0
        v_mfma_f32_16x16x32_bf16 v[64:67], v[22:25], v[84:87], v[64:67]
        v_mfma_f32_16x16x32_bf16 v[68:71], v[30:33], v[84:87], v[68:71]
        buffer_store_dwordx2 v[18:19], v3, s[40:43], s58 offen sc0 sc1
        buffer_store_dwordx2 v[26:27], v3, s[40:43], s58 offen offset:512 sc0 sc1
        s_cmp_eq_u32 s50, 63
        s_cbranch_scc1 L_ch_fin
        v_add_f32 v94, v94, v54
        v_add_f32 v95, v95, v55
        v_add_f32 v92, v92, v93
        v_add_f32 v94, v94, v95
        v_add_f32 v92, v92, v94
        v_mov_b32 v93, v92
        s_nop 1
        v_permlane32_swap_b32 v92, v93
        v_add_f32 v92, v92, v93
        v_mov_b32 v93, v92
        s_nop 1
        v_permlane16_swap_b32 v92, v93
        v_add_f32 v92, v92, v93
        v_rcp_f32 v92, v92
        ''')
        a(f'''
        s_add_u32 s56, s56, {256*KB}
        buffer_load_dwordx4 v[20:23], v1, s[40:43], s56 offen {CO}
        buffer_load_dwordx4 v[28:31], v1, s[40:43], s56 offen offset:1024 {CO}
        ''')
        for i in range(8):
            a(f'v_mul_f32 v{64+i}, v{64+i}, v92')
        a('''
        v_cvt_pk_bf16_f32 v72, v64, v65
        v_cvt_pk_bf16_f32 v73, v66, v67
        v_cvt_pk_bf16_f32 v74, v68, v69
        v_cvt_pk_bf16_f32 v75, v70, v71
        ds_write_b128 v2, v[72:75]
        s_waitcnt lgkmcnt(0)
        s_barrier
        ''')
        stamp(5)
        for ks in range(4):
            a(f'ds_read_b128 v[{96+ks*4}:{99+ks*4}], v9 offset:{ks*512}')
        a(f'''
        v_bfe_u32 v37, v6, 3, 1
        v_lshl_add_u32 v37, v37, 9, v5
        v_mov_b32 v120, -1
        v_mov_b32 v121, -1
        v_lshlrev_b32 v122, 4, v6
        s_add_u32 s12, s59, s68
        s_mov_b64 exec, s[76:77]
        buffer_store_dwordx2 v[120:121], v122, s[40:43], s12 offen {st}
        s_mov_b64 exec, -1
        ''')
        accs = [40, 44, 48, 52, 56, 60, 112, 116]

        def pstore(pr):
            d0, d1 = accs[2 * pr], accs[2 * pr + 1]
            for r in range(4):
                a(f'v_cndmask_b32 v{d0+r}, v{d1+r}, v{d0+r}, s[60:61]')
            a(f'buffer_store_dwordx4 v[{d0}:{d0+3}], v37, s[40:43], s53 offen offset:{pr*1024} {st}')
        a('s_waitcnt lgkmcnt(0)')
        for dtl in range(8):
            acc = f'v[{accs[dtl]}:{accs[dtl]+3}]'
            for ks in range(4):
                b = 128 + (dtl * 4 + ks) * 4
                a(f'v_mfma_f32_16x16x32_bf16 {acc}, v[{b}:{b+3}], v[{96+ks*4}:{99+ks*4}], {"0" if ks == 0 else acc}')
            if dtl in (3, 5, 7):
                pstore((dtl - 3) // 2)
        a('s_nop 7')
        pstore(3)
        stamp(6)
        a(f'''
        s_add_u32 s50, s50, 1
        s_add_u32 s12, s54, {128*KB}
        s_add_u32 s13, s54, {256*KB}
        s_add_u32 s14, s54, {384*KB}
        s_mov_b32 s19, {SPIN}
        ''')
        def pr_issue(b):
            for i, so in enumerate(('s54', 's12', 's13', 's14')):
                a(f'buffer_load_dwordx4 v[{b+i*4}:{b+i*4+3}], v39, s[40:43], {so} offen {ld}')

        def pr_check(b, lbl):
            a(f'''
            v_max3_u32 v34, v{b}, v{b+1}, v{b+2}
            v_max3_u32 v35, v{b+3}, v{b+4}, v{b+5}
            v_max3_u32 v36, v{b+6}, v{b+7}, v{b+8}
            v_max3_u32 v37, v{b+9}, v{b+10}, v{b+11}
            v_max3_u32 v34, v34, v{b+12}, v{b+13}
            v_max3_u32 v35, v35, v{b+14}, v{b+15}
            v_max3_u32 v34, v34, v36, v37
            v_max_u32 v34, v34, v35
            v_cmp_eq_u32 vcc, -1, v34
            s_cbranch_vccz {lbl}
            ''')
        if POLLMODE == 0:
            pr_issue(64)
            a.label(L('pr_loop'))
            pr_issue(80)
            a('s_waitcnt vmcnt(4)')
            pr_check(64, L('pr_okA'))
            pr_issue(64)
            a('s_waitcnt vmcnt(4)')
            pr_check(80, L('pr_okB'))
        else:
            a.label(L('pr_loop'))
            pr_issue(64)
            a('s_waitcnt vmcnt(0)')
            pr_check(64, L('pr_okA'))
            if POLLMODE >= 2:
                a(f's_sleep {POLLMODE-1}')
        a(f'''
        s_sub_u32 s19, s19, 1
        s_cmp_lg_u32 s19, 0
        s_cbranch_scc1 {L('pr_loop')}
        s_branch L_ch_done
        ''')
        a.label(L('pr_okB'))
        for r in range(4):
            a(f'v_add_f32 v{96+r}, v{80+r}, v{84+r}')
            a(f'v_add_f32 v{100+r}, v{88+r}, v{92+r}')
        a(f's_branch {L("pr_join")}')
        a.label(L('pr_okA'))
        for r in range(4):
            a(f'v_add_f32 v{96+r}, v{64+r}, v{68+r}')
            a(f'v_add_f32 v{100+r}, v{72+r}, v{76+r}')
        a.label(L('pr_join'))
        stamp(7)
        for r in range(4):
            a(f'v_add_f32 v{96+r}, v{96+r}, v{100+r}')
        a('s_nop 1')
        for r in range(4):
            a(f'v_add_f32_dpp v{96+r}, v{96+r}, v{96+r} row_ror:8 row_mask:0xf bank_mask:0xf')
        for r in range(4):
            a(f'v_mov_b32 v{100+r}, v{96+r}')
        a('s_nop 0')
        for r in range(4):
            a(f'v_permlane32_swap_b32 v{96+r}, v{100+r}')
        for r in range(4):
            a(f'v_add_f32 v{96+r}, v{96+r}, v{100+r}')
        for r in range(4):
            a(f'v_mov_b32 v{100+r}, v{96+r}')
        a('s_nop 0')
        for r in range(4):
            a(f'v_permlane16_swap_b32 v{96+r}, v{100+r}')
        for r in range(4):
            a(f'v_add_f32 v{96+r}, v{96+r}, v{100+r}')
        a(f'''
        v_cvt_pk_bf16_f32 v96, v96, v97
        v_cvt_pk_bf16_f32 v97, v98, v99
        v_lshlrev_b32 v98, 4, v6
        s_add_u32 s15, s52, s68
        s_mov_b64 exec, s[76:77]
        buffer_store_dwordx2 v[96:97], v98, s[40:43], s15 offen {st}
        s_mov_b64 exec, -1
        v_mov_b32 v100, -1
        v_mov_b32 v101, -1
        v_mov_b32 v102, -1
        v_mov_b32 v103, -1
        buffer_store_dwordx4 v[100:103], v39, s[40:43], s54 offen {st}
        buffer_store_dwordx4 v[100:103], v39, s[40:43], s12 offen {st}
        buffer_store_dwordx4 v[100:103], v39, s[40:43], s13 offen {st}
        buffer_store_dwordx4 v[100:103], v39, s[40:43], s14 offen {st}
        ''')
        stamp(8)
        if STAMP:
            a(f'''
            s_cmp_lg_u32 s3, 0
            s_cbranch_scc1 {L('nost')}
            s_lshl_b32 s12, s50, 6
            s_lshl_b32 s13, s4, 12
            s_add_u32 s12, s12, s13
            s_add_u32 s12, s12, {FLAGS + 65536}
            v_mov_b32 v35, 0
            ''')
            for i in range(9):
                a(f'v_mov_b32 v34, s{80+i}')
                a(f'buffer_store_dword v34, v35, s[40:43], s12 offen offset:{i*4}')
            a.label(L('nost'))
        a(f'''
        s_mov_b32 s12, s51
        s_mov_b32 s51, s52
        s_mov_b32 s52, s59
        s_mov_b32 s59, s12
        s_xor_b32 s53, s53, {512*KB}
        s_xor_b32 s54, s54, {512*KB}
        s_add_u32 s57, s57, {128*KB}
        s_add_u32 s58, s58, {128*KB}
        s_branch {L('step')}
        ''')
    a.label('L_ch_fin')
    a(f'''
    s_waitcnt vmcnt(0)
    s_barrier
    s_cmp_lg_u32 s3, 0
    s_cbranch_scc1 L_ch_done
    s_mov_b64 exec, 1
    v_mov_b32 v34, 64
    v_mov_b32 v35, 0
    buffer_store_dword v34, v35, s[40:43], s72 offen {CO}
    s_branch L_ch_done
    ''')
    a.label('L_w_entry')
    a('''
    s_load_dwordx2 s[10:11], s[0:1], 0
    s_load_dwordx2 s[12:13], s[0:1], 88
    s_waitcnt lgkmcnt(0)
    ''')
    srd(a, 84, 10, 2048 * 512 * 2)
    srd(a, 88, 12, 2048 * 512 * 2)
    a.label('L_w_loop')
    a(f'''
    s_barrier
    s_cmp_lg_u32 s3, 0
    s_cbranch_scc1 L_w_get
    s_mov_b64 exec, 1
    v_mov_b32 v10, 1
    v_mov_b32 v11, 64
    buffer_atomic_add v10, v11, s[44:47], 0 offen sc0 sc1
    v_mov_b32 v11, {ROLE + 4}
    s_waitcnt vmcnt(0)
    ds_write_b32 v11, v10
    s_waitcnt lgkmcnt(0)
    s_mov_b64 exec, -1
    ''')
    a.label('L_w_get')
    a(f'''
    s_barrier
    v_mov_b32 v11, {ROLE + 4}
    ds_read_b32 v10, v11
    v_and_b32 v6, 63, v0
    v_lshlrev_b32 v1, 4, v6
    v_lshlrev_b32 v3, 3, v6
    v_and_b32 v8, 15, v6
    v_lshrrev_b32 v9, 4, v6
    s_waitcnt lgkmcnt(0)
    v_readfirstlane_b32 s2, v10
    s_cmp_ge_u32 s2, {NTASK}
    s_cbranch_scc1 L_ch_done
    s_cmp_ge_u32 s2, 992
    s_cbranch_scc1 L_w_t3
    s_cmp_ge_u32 s2, 512
    s_cbranch_scc1 L_w_t2
    s_lshr_b32 s5, s2, 5
    s_and_b32 s4, s2, 31
    s_add_u32 s4, s4, 16
    s_branch L_w_g1
    ''')
    a.label('L_w_t2')
    a('''
    s_sub_u32 s6, s2, 512
    s_mul_i32 s5, s6, 2185
    s_lshr_b32 s5, s5, 16            ; tb
    s_mul_i32 s7, s5, 30
    s_sub_u32 s4, s6, s7             ; r
    s_add_u32 s7, s4, 32
    s_cmp_lt_u32 s4, 16
    s_cselect_b32 s4, s4, s7
    ''')
    a.label('L_w_g1')
    a('s_mov_b32 s92, s4')
    a('s_mov_b32 s93, s5')
    k_gemm1.gemm1_body(a, ST=CO)
    a(f'''
    s_waitcnt vmcnt(0)
    s_barrier
    s_cmp_lg_u32 s3, 0
    s_cbranch_scc1 L_w_loop
    s_lshl_b32 s6, s93, 6
    s_add_u32 s6, s6, s92
    s_lshl_b32 s6, s6, 2
    s_add_u32 s6, s6, {TILEF}
    s_mov_b64 exec, 1
    v_mov_b32 v10, 1
    v_mov_b32 v11, 0
    buffer_store_dword v10, v11, s[40:43], s6 offen {CO}
    s_mov_b64 exec, -1
    s_branch L_w_loop
    ''')

    def wpoll(lbl, nl):
        a(f'''
        s_mov_b64 exec, {(1 << nl) - 1}
        s_mov_b32 s19, {SPIN}
        ''')
        a.label(lbl + '_loop')
        a(f'''
        buffer_load_dword v12, v10, s[40:43], 0 offen {CO}
        s_waitcnt vmcnt(0)
        v_cmp_lt_u32 vcc, v12, v11
        s_cbranch_vccz {lbl}_ok
        s_sleep 16
        s_sub_u32 s19, s19, 1
        s_cmp_lg_u32 s19, 0
        s_cbranch_scc1 {lbl}_loop
        s_mov_b64 exec, -1
        s_branch L_ch_done
        ''')
        a.label(lbl + '_ok')
        a('s_mov_b64 exec, -1')

    a.label('L_w_t3')
    a(f'''
    s_sub_u32 s6, s2, 992
    s_lshr_b32 s92, s6, 5            ; sp
    s_and_b32 s7, s6, 31             ; r
    s_cmp_ge_u32 s7, 16
    s_cbranch_scc1 L_w_g2
    s_lshr_b32 s5, s7, 3
    s_lshl_b32 s6, s92, 1
    s_add_u32 s5, s5, s6             ; seg
    s_and_b32 s6, s7, 7
    s_lshl_b32 s6, s6, 2
    s_add_u32 s6, s6, s3             ; h
    s_lshr_b32 s10, s5, 2            ; tb
    s_lshl_b32 s10, s10, 6
    s_lshr_b32 s11, s6, 1
    s_add_u32 s10, s10, s11
    s_lshl_b32 s10, s10, 2
    s_add_u32 s10, s10, {TILEF}
    v_lshlrev_b32 v10, 6, v6
    v_add_u32 v10, s10, v10
    s_lshl_b32 s10, s6, 2
    s_add_u32 s10, s10, {CHF}
    v_mov_b32 v12, s10
    v_mov_b32 v11, 1
    s_add_u32 s10, s5, 1
    v_mov_b32 v13, s10
    v_cmp_eq_u32 vcc, 3, v6
    s_nop 1
    v_cndmask_b32 v10, v10, v12, vcc
    v_cndmask_b32 v11, v11, v13, vcc
    ''')
    wpoll('L_w_pa', 4)
    k_attn.attn_body(a, ST=CO, LD=CO)
    a(f'''
    s_waitcnt vmcnt(0)
    s_barrier
    s_cmp_lg_u32 s3, 0
    s_cbranch_scc1 L_w_loop
    s_lshl_b32 s6, s92, 2
    s_add_u32 s6, s6, {ATC}
    s_mov_b64 exec, 1
    v_mov_b32 v10, 1
    v_mov_b32 v11, 0
    buffer_atomic_add v10, v11, s[40:43], s6 offen sc1
    s_mov_b64 exec, -1
    s_branch L_w_loop
    ''')
    a.label('L_w_g2')
    a(f'''
    s_sub_u32 s4, s7, 16             ; db
    s_mov_b32 s5, s92                ; sp
    s_lshr_b32 s10, s92, 1
    s_lshl_b32 s10, s10, 8
    s_add_u32 s10, s10, {TILEF + 48*4}
    v_lshlrev_b32 v10, 2, v6
    v_add_u32 v10, s10, v10
    s_lshl_b32 s10, s92, 2
    s_add_u32 s10, s10, {ATC}
    v_mov_b32 v12, s10
    v_mov_b32 v11, 1
    v_mov_b32 v13, 16
    v_cmp_eq_u32 vcc, 14, v6
    s_nop 1
    v_cndmask_b32 v10, v10, v12, vcc
    v_cndmask_b32 v11, v11, v13, vcc
    ''')
    wpoll('L_w_pg', 15)
    k_gemm2b.gemm2_body(a, LD=CO)
    a('s_branch L_w_loop')
    a.label('L_ch_done')
    rstamp(3)
    a.label('L_ch_end')
    a('s_endpgm')
    return kernel_desc(name, 256, 100, accum=256, nfv=512)
```

```python
from common import *
import os
import k_gemm1, k_attn, k_gemm2, k_gemm2b
NG2 = 32 // k_gemm2b.ND

TILEF = FLAGS
CHF = FLAGS + 4096
ATC = FLAGS + 4352
NTASK = 992 + 32 * (16 + NG2)
CO = 'sc0 sc1'

CH_WGS = 256
SCR = 128 * KB
OFR = 134 * KB
MEML = 136 * KB
PFB = 144 * KB
ROLE = 133 * KB + 1000
CH_LDS = 160 * KB
SPIN = 1 << 20
STAMP = int(os.environ.get('STAMP', '0'))
POLLMODE = int(os.environ.get('POLLMODE', '1'))
FORCE_SLOW = int(os.environ.get('FORCE_SLOW', '0'))


class LdsQ:
    def __init__(self, a):
        self.a = a
        self.order = []
        self.done = -1

    def issue(self, tag, text):
        self.a(text)
        self.order.append(tag)

    def need(self, tag):
        i = self.order.index(tag)
        if i <= self.done:
            return
        n = len(self.order) - 1 - i
        self.a(f's_waitcnt lgkmcnt({min(n, 15)})')
        self.done = i


def gen_chain(a):
    def rstamp(i):
        if STAMP:
            a(f'''
            s_memrealtime s[96:97]
            s_waitcnt lgkmcnt(0)
            s_lshl_b32 s98, s94, 4
            s_add_u32 s98, s98, {FLAGS + 32768 + i*4}
            v_mov_b32 v34, s96
            v_mov_b32 v35, 0
            buffer_store_dword v34, v35, s[40:43], s98 offen
            ''')

    def stamp(i):
        if STAMP:
            a(f'''
            s_memtime s[96:97]
            s_waitcnt lgkmcnt(0)
            s_mov_b32 s{80+i}, s96
            ''')

    name = 'chain_kernel'
    kernel_header(a, name)
    a(f'''
    s_cmp_ge_u32 s2, {CH_WGS}
    s_cbranch_scc1 L_ch_end
    s_load_dwordx2 s[8:9], s[0:1], 104
    s_load_dwordx2 s[10:11], s[0:1], 96
    s_mov_b32 s94, s2
    v_lshrrev_b32 v2, 6, v0
    v_and_b32 v6, 63, v0             ; lane
    v_lshlrev_b32 v1, 4, v6          ; lane*16
    v_readfirstlane_b32 s3, v2       ; wave
    v_lshlrev_b32 v3, 3, v6          ; lane*8
    s_waitcnt lgkmcnt(0)
    ''')
    srd(a, 40, 8, WS_BYTES)
    srd(a, 44, 10, 256)
    rstamp(0)
    a(f'''
    s_cmp_lg_u32 s3, 0
    s_cbranch_scc1 L_ch_role_wait
    s_getreg_b32 s12, hwreg(HW_REG_XCC_ID)
    s_and_b32 s12, s12, 7
    s_mov_b64 exec, 1
    v_mov_b32 v10, 1
    s_lshl_b32 s13, s12, 2
    v_mov_b32 v11, s13
    v_mov_b32 v12, 1
    v_mov_b32 v13, 32
    v_mov_b32 v16, 36
    buffer_atomic_add v10, v11, s[44:47], 0 offen sc0 sc1
    buffer_atomic_add v12, v13, s[44:47], 0 offen sc0 sc1
    s_waitcnt vmcnt(0)
    v_readfirstlane_b32 s13, v10
    v_readfirstlane_b32 s14, v12
    s_add_u32 s15, s12, 1
    s_cmp_lg_u32 s13, {31 if not FORCE_SLOW else 9999}
    s_cbranch_scc1 L_ch_role_poll
    v_mov_b32 v14, s15
    v_mov_b32 v15, 0
    buffer_atomic_cmpswap v[14:15], v16, s[44:47], 0 offen sc1
    s_waitcnt vmcnt(0)
    ''')
    a.label('L_ch_role_poll')
    a(f's_mov_b32 s19, {SPIN}')
    a.label('L_ch_role_loop')
    a(f'''
    buffer_load_dwordx2 v[18:19], v13, s[44:47], 0 offen sc0 sc1
    s_waitcnt vmcnt(0)
    v_readfirstlane_b32 s16, v18     ; count
    v_readfirstlane_b32 s17, v19     ; winner
    s_cmp_lg_u32 s17, 0
    s_cbranch_scc1 L_ch_role_dec
    s_sub_u32 s19, s19, 1
    s_cmp_eq_u32 s19, 0
    s_cbranch_scc1 L_ch_role_dec
    s_cmp_lt_u32 s16, {CH_WGS}
    s_cbranch_scc1 L_ch_role_loop
    v_mov_b32 v14, 100
    v_mov_b32 v15, 0
    buffer_atomic_cmpswap v[14:15], v16, s[44:47], 0 offen sc1
    s_waitcnt vmcnt(0)
    s_branch L_ch_role_loop
    ''')
    a.label('L_ch_role_dec')
    a(f'''
    s_mov_b32 s18, 0xffff
    s_cmp_eq_u32 s17, 100
    s_cbranch_scc0 L_ch_role_fast
    s_or_b32 s20, s14, 0x100
    s_cmp_lt_u32 s14, 32
    s_cselect_b32 s18, s20, s18
    s_branch L_ch_role_wr
    ''')
    a.label('L_ch_role_fast')
    a('''
    s_cmp_lg_u32 s17, s15
    s_cbranch_scc1 L_ch_role_wr
    s_cmp_lt_u32 s13, 32
    s_cselect_b32 s18, s13, s18
    ''')
    a.label('L_ch_role_wr')
    a(f'''
    v_mov_b32 v10, s18
    v_mov_b32 v11, {ROLE}
    ds_write_b32 v11, v10
    s_waitcnt lgkmcnt(0)
    s_mov_b64 exec, -1
    ''')
    a.label('L_ch_role_wait')
    a(f'''
    s_barrier
    v_mov_b32 v11, {ROLE}
    ds_read_b32 v10, v11
    s_waitcnt lgkmcnt(0)
    v_readfirstlane_b32 s18, v10
    s_cmp_eq_u32 s18, 0xffff
    s_cbranch_scc1 L_w_entry
    s_and_b32 s4, s18, 0xff          ; h
    s_lshr_b32 s5, s18, 8            ; mode
    ''')
    a(f'''
    s_lshl_b32 s6, s4, 3
    s_lshl_b32 s7, s3, 1
    s_add_u32 s6, s6, s7             ; h*8+2w
    s_lshl_b32 s6, s6, 14
    s_add_u32 s6, s6, {WQKV}
    ''')
    for ti in range(4):
        which, sub = ti // 2, ti % 2
        for q4 in range(4):
            a(f's_add_u32 s7, s6, {which*256*16*KB + sub*16*KB + q4*4*KB}')
            for j in range(4):
                kt = q4 * 4 + j
                a(f'buffer_load_dwordx4 a[{ti*64+kt*4}:{ti*64+kt*4+3}], v1, s[40:43], s7 offen offset:{j*1024}')
    a(f'''
    s_lshl_b32 s13, s3, 15
    ''')
    for c in range(8):
        a(f'''
        s_add_u32 m0, s13, {c*4096}
        s_add_u32 s7, s6, {2*256*16*KB + c*4*KB}
        ''')
        for j in range(4):
            a(f'buffer_load_dwordx4 v1, s[40:43], s7 offen offset:{j*1024} lds')
    a(f'''
    s_lshl_b32 s6, s3, 20
    s_lshl_b32 s7, s4, 12            ; h*4KB
    s_add_u32 s6, s6, s7
    s_add_u32 s6, s6, {WO}
    s_lshl_b32 s7, s3, 15
    ''')
    for dtl in range(8):
        a(f's_add_u32 s12, s6, {dtl*128*KB}')
        for ks in range(4):
            r = 128 + (dtl * 4 + ks) * 4
            a(f'buffer_load_dwordx4 v[{r}:{r+3}], v1, s[40:43], s12 offen offset:{ks*1024}')
    a(f'''
    v_add_u32 v4, s7, v1
    v_and_b32 v34, 15, v6            ; col
    v_lshrrev_b32 v35, 4, v6         ; g
    v_and_b32 v36, 7, v6             ; col&7
    v_lshl_add_u32 v5, v35, 3, v36
    v_lshlrev_b32 v5, 4, v5
    v_cmp_gt_u32 s[60:61], 8, v34
    v_cmp_gt_u32 s[62:63], 32, v6    ; lanes < 32 (g<2)
    v_cmp_gt_u32 s[76:77], 8, v6     ; lanes < 8
    s_mul_i32 s12, s3, 1536
    s_add_u32 s12, s12, {SCR}
    v_add_u32 v8, s12, v5
    v_lshrrev_b32 v37, 3, v34        ; col>>3
    v_add_u32 v7, s3, v37
    v_add_u32 v7, 1, v7
    v_and_b32 v7, 3, v7              ; (w+1+hi)&3
    v_mul_u32_u24 v7, 1536, v7
    v_add3_u32 v7, v7, v5, 0
    v_add_u32 v7, {SCR}, v7
    v_add_u32 v0, s3, v37
    v_add_u32 v0, 3, v0
    v_and_b32 v0, 3, v0              ; (w+3+hi)&3
    v_mul_u32_u24 v0, 1536, v0
    v_add3_u32 v0, v0, v5, 0
    v_add_u32 v0, {SCR}, v0
    v_add_u32 v9, {OFR}, v5
    s_lshl_b32 s12, s3, 9
    v_add_u32 v2, s12, v9
    s_lshl_b32 s12, s3, 11
    s_add_u32 s12, s12, {MEML}
    v_add_u32 v38, s12, v1
    v_lshrrev_b32 v37, 3, v6
    v_lshlrev_b32 v39, 14, v37
    v_lshl_add_u32 v39, v36, 4, v39
    s_lshl_b32 s12, s3, 7
    v_add_u32 v39, s12, v39
    v_mov_b32 v24, 0
    v_mov_b32 v25, 0
    v_mov_b32 v32, 0
    v_mov_b32 v33, 0
    s_mov_b32 s50, 0
    s_lshl_b32 s12, s3, 11
    s_add_u32 s51, s12, {MEMF}
    s_add_u32 s52, s51, 8192         ; next
    s_add_u32 s59, s51, 16384
    s_lshl_b32 s53, s4, 14
    s_lshl_b32 s12, s3, 12
    s_add_u32 s53, s53, s12
    s_add_u32 s53, s53, {PART}
    s_lshl_b32 s54, s4, 9
    s_add_u32 s54, s54, {PART}
    s_lshl_b32 s12, s4, 2
    s_add_u32 s12, s12, s3
    s_lshl_b32 s12, s12, 10          ; (h*4+w) KB
    s_add_u32 s55, s12, {KF}
    s_add_u32 s57, s12, {KMF}
    s_lshl_b32 s12, s4, 3
    s_lshl_b32 s13, s3, 1
    s_add_u32 s12, s12, s13          ; h*8+2w
    s_lshl_b32 s13, s12, 10
    s_add_u32 s56, s13, {VF}
    s_lshl_b32 s13, s12, 9
    s_add_u32 s58, s13, {VMF}
    s_lshr_b32 s12, s4, 1
    s_lshl_b32 s12, s12, 9
    s_and_b32 s13, s4, 1
    s_lshl_b32 s13, s13, 3
    s_add_u32 s68, s12, s13
    s_lshl_b32 s12, s3, 7
    s_add_u32 s68, s68, s12
    s_lshl_b32 s12, s3, 11
    s_sub_u32 s68, s68, s12
    s_mov_b32 s69, 0x3e0293ee        ; scale*log2e
    ''')
    def kvwait(lbl):
        a(f'''
        s_mov_b64 exec, 3
        v_lshlrev_b32 v34, 6, v6
        s_mov_b32 s19, {SPIN}
        ''')
        a.label(lbl + '_loop')
        a(f'''
        buffer_load_dword v35, v34, s[40:43], s71 offen {CO}
        s_waitcnt vmcnt(0)
        v_cmp_eq_u32 vcc, 0, v35
        s_cbranch_vccz {lbl}_ok
        s_sleep 4
        s_sub_u32 s19, s19, 1
        s_cmp_lg_u32 s19, 0
        s_cbranch_scc1 {lbl}_loop
        s_mov_b64 exec, -1
        s_branch L_ch_done
        ''')
        a.label(lbl + '_ok')
        a('''
        s_mov_b64 exec, -1
        s_add_u32 s71, s71, 256
        ''')

    a(f'''
    s_lshr_b32 s71, s4, 1
    s_lshl_b32 s71, s71, 2
    s_add_u32 s71, s71, {TILEF + 64}
    s_lshl_b32 s72, s4, 2
    s_add_u32 s72, s72, {CHF}
    ''')
    rstamp(1)
    def pf_dma():
        a(f'''
        s_add_u32 s12, s55, {128*KB}
        s_mov_b32 m0, s73
        s_nop 0
        buffer_load_dwordx4 v1, s[40:43], s55 offen {CO} lds
        s_add_u32 m0, s73, 1024
        s_nop 0
        buffer_load_dwordx4 v1, s[40:43], s12 offen {CO} lds
        s_add_u32 m0, s73, 2048
        s_nop 0
        buffer_load_dwordx4 v1, s[40:43], s56 offen {CO} lds
        buffer_load_dwordx4 v1, s[40:43], s56 offen offset:1024 {CO} lds
        s_add_u32 s55, s55, {256*KB}
        s_add_u32 s56, s56, {256*KB}
        ''')

    a(f'''
    s_lshl_b32 s73, s3, 12
    s_add_u32 s73, s73, {PFB}
    ''')
    kvwait('L_ch_kv0')
    rstamp(2)
    pf_dma()
    a(f'''
    s_waitcnt vmcnt(0)
    s_barrier
    s_cmp_eq_u32 s5, 0
    s_cbranch_scc0 L_ch_slow_step
    ''')

    for mode in ('fast', 'slow'):
        ld = os.environ.get('FASTLD', 'sc1') if mode == 'fast' else 'sc0 sc1'
        st = os.environ.get('FASTST', '') if mode == 'fast' else 'sc0 sc1'
        L = lambda x: f'L_ch_{mode}_{x}'

        a.label(L('step'))
        stamp(0)
        def pm_issue(b):
            a(f'''
            buffer_load_dwordx4 v[{b}:{b+3}], v1, s[40:43], s51 offen {ld}
            buffer_load_dwordx4 v[{b+4}:{b+7}], v1, s[40:43], s51 offen offset:1024 {ld}
            ''')

        def pm_check(b, lbl):
            a(f'''
            v_max3_u32 v34, v{b}, v{b+1}, v{b+2}
            v_max3_u32 v35, v{b+3}, v{b+4}, v{b+5}
            v_max3_u32 v34, v34, v{b+6}, v{b+7}
            v_max_u32 v34, v34, v35
            v_cmp_eq_u32 vcc, -1, v34
            s_cbranch_vccz {lbl}
            ''')
        a(f'''
        s_mov_b32 s19, {SPIN}
        s_waitcnt vmcnt(0)
        ''')
        if POLLMODE == 0:
            pm_issue(80)
            a.label(L('pm_loop'))
            pm_issue(88)
            a('s_waitcnt vmcnt(2)')
            pm_check(80, L('pm_okA'))
            pm_issue(80)
            a('s_waitcnt vmcnt(2)')
            pm_check(88, L('pm_okB'))
        else:
            a.label(L('pm_loop'))
            pm_issue(80)
            a('s_waitcnt vmcnt(0)')
            pm_check(80, L('pm_okA'))
            if POLLMODE >= 2:
                a(f's_sleep {POLLMODE-1}')
        a(f'''
        s_sub_u32 s19, s19, 1
        s_cmp_lg_u32 s19, 0
        s_cbranch_scc1 {L('pm_loop')}
        s_branch L_ch_done
        ''')
        a.label(L('pm_okB'))
        a(f'''
        ds_write_b128 v38, v[88:91]
        ds_write_b128 v38, v[92:95] offset:1024
        s_branch {L('pm_join')}
        ''')
        a.label(L('pm_okA'))
        a(f'''
        ds_write_b128 v38, v[80:83]
        ds_write_b128 v38, v[84:87] offset:1024
        ''')
        a.label(L('pm_join'))
        stamp(1)
        a(f'''
        s_waitcnt lgkmcnt(0)
        s_barrier
        s_cmp_lg_u32 s3, 0
        s_cbranch_scc1 {L('nocf')}
        s_cmp_eq_u32 s50, 0
        s_cbranch_scc1 {L('nocf')}
        s_mov_b64 exec, 1
        s_sub_u32 s12, s50, 1
        v_mov_b32 v34, s12
        v_mov_b32 v35, 0
        buffer_store_dword v34, v35, s[40:43], s72 offen {CO}
        s_mov_b64 exec, -1
        ''')
        a.label(L('nocf'))
        q = LdsQ(a)
        a('v_add_u32 v34, s73, v1')
        q.issue('pf0', 'ds_read_b128 v[10:13], v34')
        q.issue('pf1', 'ds_read_b128 v[14:17], v34 offset:1024')
        q.issue('pf2', 'ds_read_b128 v[20:23], v34 offset:2048')
        q.issue('pf3', 'ds_read_b128 v[28:31], v34 offset:3072')
        a(f'''
        s_cmp_eq_u32 s50, 0
        s_cbranch_scc1 {L('novm')}
        buffer_store_dwordx2 v[18:19], v3, s[40:43], s58 offen sc0 sc1
        buffer_store_dwordx2 v[26:27], v3, s[40:43], s58 offen offset:512 sc0 sc1
        s_add_u32 s58, s58, {128*KB}
        ''')
        a.label(L('novm'))

        def rd_mem(kt):
            b = 96 + (kt % 8) * 4
            q.issue(('m', kt), f'ds_read_b128 v[{b}:{b+3}], v9 offset:{MEML - OFR + kt*512}')

        def rd_wv(kt):
            for t in range(2):
                b = 64 + ((kt % 2) * 2 + t) * 4
                q.issue(('w', kt, t), f'ds_read_b128 v[{b}:{b+3}], v4 offset:{(t*16+kt)*1024}')

        def mf_v(kt):
            m = 96 + (kt % 8) * 4
            for t in range(2):
                q.need(('w', kt, t))
                b = 64 + ((kt % 2) * 2 + t) * 4
                acc = f'v[{56+t*4}:{59+t*4}]'
                a(f'v_mfma_f32_16x16x32_bf16 {acc}, v[{m}:{m+3}], v[{b}:{b+3}], {"0" if kt == 0 else acc}')

        rd_mem(0)
        rd_wv(0)
        rd_mem(1)
        rd_wv(1)
        for kt in range(2, 8):
            rd_mem(kt)
        for kt in range(16):
            q.need(('m', kt))
            if kt == 0:
                stamp(2)
            m = 96 + (kt % 8) * 4
            for ti in range(4):
                acc = f'v[{40+ti*4}:{43+ti*4}]'
                a(f'v_mfma_f32_16x16x32_bf16 {acc}, a[{ti*64+kt*4}:{ti*64+kt*4+3}], v[{m}:{m+3}], {"0" if kt == 0 else acc}')
            if kt < 8:
                mf_v(kt)
                rd_mem(kt + 8)
                rd_wv(kt + 2)
            if kt == 1:
                q.need('pf3')
                a(f'''
                s_and_b32 s12, s50, 3
                s_cmp_lg_u32 s12, 3
                s_cbranch_scc1 {L('nokv')}
                s_cmp_eq_u32 s50, 63
                s_cbranch_scc1 {L('nokv')}
                ''')
                kvwait(L('kv'))
                a.label(L('nokv'))
                pf_dma()
        stamp(3)
        a('''
        s_nop 7
        v_cvt_pk_bf16_f32 v34, v40, v41
        v_cvt_pk_bf16_f32 v35, v42, v43
        v_cvt_pk_bf16_f32 v36, v44, v45
        v_cvt_pk_bf16_f32 v37, v46, v47
        v_cvt_pk_bf16_f32 v40, v48, v49
        v_cvt_pk_bf16_f32 v41, v50, v51
        v_cvt_pk_bf16_f32 v42, v52, v53
        v_cvt_pk_bf16_f32 v43, v54, v55
        s_nop 1
        v_mfma_f32_16x16x32_bf16 v[44:47], v[40:43], v[34:37], 0
        v_mfma_f32_16x16x32_bf16 v[48:51], v[10:13], v[34:37], 0
        v_mfma_f32_16x16x32_bf16 v[52:55], v[14:17], v[34:37], 0
        buffer_store_dwordx4 v[40:43], v1, s[40:43], s57 offen sc0 sc1
        ''')
        mf_v(8)
        rd_wv(10)
        a('s_nop 3')
        q.issue('t0', 'ds_write_b128 v8, v[44:47]')
        q.issue('t1', 'ds_write_b128 v8, v[48:51] offset:512')
        q.issue('t2', 'ds_write_b128 v8, v[52:55] offset:1024')
        mf_v(9)
        rd_wv(11)
        q.need('t2')
        a('s_barrier')
        stamp(4)
        for t in range(3):
            q.issue(('r1', t), f'ds_read_b128 v[{80+t*4}:{83+t*4}], v7 offset:{t*512}')
        for t in range(3):
            q.issue(('r2', t), f'ds_read_b128 v[{44+t*4}:{47+t*4}], v0 offset:{t*512}')
        a('v_mov_b32 v95, 0xf149f2ca')
        mf_v(10)
        rd_wv(12)
        q.need(('r2', 2))
        for i in range(12):
            a(f'v_add_f32 v{44+i}, v{44+i}, v{80+i}')
        mf_v(11)
        rd_wv(13)
        for i in range(12):
            a(f'v_add_f32_dpp v{44+i}, v{44+i}, v{44+i} row_ror:8 row_mask:0xf bank_mask:0xf')
        for i in range(4):
            a(f'v_cndmask_b32 v{44+i}, v95, v{44+i}, s[62:63]')
        mf_v(12)
        rd_wv(14)
        a('''
        v_max3_f32 v92, v48, v49, v50
        v_max3_f32 v93, v51, v52, v53
        v_max3_f32 v94, v54, v55, v44
        v_max3_f32 v92, v92, v45, v46
        v_max3_f32 v93, v93, v94, v47
        v_max_f32 v92, v92, v93
        v_mov_b32 v93, v92
        ''')
        mf_v(13)
        rd_wv(15)
        a('''
        v_permlane32_swap_b32 v92, v93
        v_max_f32 v92, v92, v93
        v_mov_b32 v93, v92
        s_nop 1
        v_permlane16_swap_b32 v92, v93
        v_max_f32 v92, v92, v93
        v_mul_f32 v92, s69, v92
        ''')
        for i in range(12):
            a(f'v_fma_f32 v{44+i}, v{44+i}, s69, -v92')
        mf_v(14)
        for i in range(12):
            a(f'v_exp_f32 v{44+i}, v{44+i}')
            if i == 5:
                mf_v(15)
        a('''
        v_mov_b32 v86, 0
        v_mov_b32 v87, 0
        v_cvt_pk_bf16_f32 v80, v44, v45
        v_cvt_pk_bf16_f32 v81, v46, v47
        v_cvt_pk_bf16_f32 v82, v48, v49
        v_cvt_pk_bf16_f32 v83, v50, v51
        v_cvt_pk_bf16_f32 v84, v52, v53
        v_cvt_pk_bf16_f32 v85, v54, v55
        v_add_f32 v92, v44, v45
        v_add_f32 v93, v46, v47
        v_add_f32 v94, v48, v49
        v_add_f32 v95, v50, v51
        v_cvt_pk_bf16_f32 v18, v56, v57
        v_cvt_pk_bf16_f32 v19, v58, v59
        v_cvt_pk_bf16_f32 v26, v60, v61
        v_cvt_pk_bf16_f32 v27, v62, v63
        v_add_f32 v92, v92, v52
        v_add_f32 v93, v93, v53
        v_mfma_f32_16x16x32_bf16 v[64:67], v[18:21], v[80:83], 0
        v_mfma_f32_16x16x32_bf16 v[68:71], v[26:29], v[80:83], 0
        v_mfma_f32_16x16x32_bf16 v[64:67], v[22:25], v[84:87], v[64:67]
        v_mfma_f32_16x16x32_bf16 v[68:71], v[30:33], v[84:87], v[68:71]
        s_cmp_eq_u32 s50, 63
        s_cbranch_scc1 L_ch_fin
        v_add_f32 v94, v94, v54
        v_add_f32 v95, v95, v55
        v_add_f32 v92, v92, v93
        v_add_f32 v94, v94, v95
        v_add_f32 v92, v92, v94
        v_mov_b32 v93, v92
        s_nop 1
        v_permlane32_swap_b32 v92, v93
        v_add_f32 v92, v92, v93
        v_mov_b32 v93, v92
        s_nop 1
        v_permlane16_swap_b32 v92, v93
        v_add_f32 v92, v92, v93
        v_rcp_f32 v92, v92
        s_nop 0
        ''')
        for i in range(8):
            a(f'v_mul_f32 v{64+i}, v{64+i}, v92')
        a('''
        v_cvt_pk_bf16_f32 v72, v64, v65
        v_cvt_pk_bf16_f32 v73, v66, v67
        v_cvt_pk_bf16_f32 v74, v68, v69
        v_cvt_pk_bf16_f32 v75, v70, v71
        ds_write_b128 v2, v[72:75]
        s_waitcnt lgkmcnt(0)
        s_barrier
        ''')
        stamp(5)
        for ks in range(4):
            a(f'ds_read_b128 v[{96+ks*4}:{99+ks*4}], v9 offset:{ks*512}')
        a(f'''
        v_bfe_u32 v37, v6, 3, 1
        v_lshl_add_u32 v37, v37, 9, v5
        v_mov_b32 v120, -1
        v_mov_b32 v121, -1
        v_lshlrev_b32 v122, 4, v6
        s_add_u32 s12, s59, s68
        s_mov_b64 exec, s[76:77]
        buffer_store_dwordx2 v[120:121], v122, s[40:43], s12 offen {st}
        s_mov_b64 exec, -1
        ''')
        accs = [40, 44, 48, 52, 56, 60, 112, 116]

        def pstore(pr):
            d0, d1 = accs[2 * pr], accs[2 * pr + 1]
            for r in range(4):
                a(f'v_cndmask_b32 v{d0+r}, v{d1+r}, v{d0+r}, s[60:61]')
            a(f'buffer_store_dwordx4 v[{d0}:{d0+3}], v37, s[40:43], s53 offen offset:{pr*1024} {st}')
        a('s_waitcnt lgkmcnt(0)')
        for dtl in range(8):
            acc = f'v[{accs[dtl]}:{accs[dtl]+3}]'
            for ks in range(4):
                b = 128 + (dtl * 4 + ks) * 4
                a(f'v_mfma_f32_16x16x32_bf16 {acc}, v[{b}:{b+3}], v[{96+ks*4}:{99+ks*4}], {"0" if ks == 0 else acc}')
            if dtl in (3, 5, 7):
                pstore((dtl - 3) // 2)
        a('s_nop 7')
        pstore(3)
        stamp(6)
        a(f'''
        s_add_u32 s50, s50, 1
        s_add_u32 s12, s54, {128*KB}
        s_add_u32 s13, s54, {256*KB}
        s_add_u32 s14, s54, {384*KB}
        s_mov_b32 s19, {SPIN}
        ''')
        def pr_issue(b):
            for i, so in enumerate(('s54', 's12', 's13', 's14')):
                a(f'buffer_load_dwordx4 v[{b+i*4}:{b+i*4+3}], v39, s[40:43], {so} offen {ld}')

        def pr_check(b, lbl):
            a(f'''
            v_max3_u32 v34, v{b}, v{b+1}, v{b+2}
            v_max3_u32 v35, v{b+3}, v{b+4}, v{b+5}
            v_max3_u32 v36, v{b+6}, v{b+7}, v{b+8}
            v_max3_u32 v37, v{b+9}, v{b+10}, v{b+11}
            v_max3_u32 v34, v34, v{b+12}, v{b+13}
            v_max3_u32 v35, v35, v{b+14}, v{b+15}
            v_max3_u32 v34, v34, v36, v37
            v_max_u32 v34, v34, v35
            v_cmp_eq_u32 vcc, -1, v34
            s_cbranch_vccz {lbl}
            ''')
        if POLLMODE == 0:
            pr_issue(64)
            a.label(L('pr_loop'))
            pr_issue(80)
            a('s_waitcnt vmcnt(4)')
            pr_check(64, L('pr_okA'))
            pr_issue(64)
            a('s_waitcnt vmcnt(4)')
            pr_check(80, L('pr_okB'))
        else:
            a.label(L('pr_loop'))
            pr_issue(64)
            a('s_waitcnt vmcnt(0)')
            pr_check(64, L('pr_okA'))
            if POLLMODE >= 2:
                a(f's_sleep {POLLMODE-1}')
        a(f'''
        s_sub_u32 s19, s19, 1
        s_cmp_lg_u32 s19, 0
        s_cbranch_scc1 {L('pr_loop')}
        s_branch L_ch_done
        ''')
        a.label(L('pr_okB'))
        for r in range(4):
            a(f'v_add_f32 v{96+r}, v{80+r}, v{84+r}')
            a(f'v_add_f32 v{100+r}, v{88+r}, v{92+r}')
        a(f's_branch {L("pr_join")}')
        a.label(L('pr_okA'))
        for r in range(4):
            a(f'v_add_f32 v{96+r}, v{64+r}, v{68+r}')
            a(f'v_add_f32 v{100+r}, v{72+r}, v{76+r}')
        a.label(L('pr_join'))
        stamp(7)
        for r in range(4):
            a(f'v_add_f32 v{96+r}, v{96+r}, v{100+r}')
        a('s_nop 1')
        for r in range(4):
            a(f'v_add_f32_dpp v{96+r}, v{96+r}, v{96+r} row_ror:8 row_mask:0xf bank_mask:0xf')
        for r in range(4):
            a(f'v_mov_b32 v{100+r}, v{96+r}')
        a('s_nop 0')
        for r in range(4):
            a(f'v_permlane32_swap_b32 v{96+r}, v{100+r}')
        for r in range(4):
            a(f'v_add_f32 v{96+r}, v{96+r}, v{100+r}')
        for r in range(4):
            a(f'v_mov_b32 v{100+r}, v{96+r}')
        a('s_nop 0')
        for r in range(4):
            a(f'v_permlane16_swap_b32 v{96+r}, v{100+r}')
        for r in range(4):
            a(f'v_add_f32 v{96+r}, v{96+r}, v{100+r}')
        a(f'''
        v_cvt_pk_bf16_f32 v96, v96, v97
        v_cvt_pk_bf16_f32 v97, v98, v99
        v_lshlrev_b32 v98, 4, v6
        s_add_u32 s15, s52, s68
        s_mov_b64 exec, s[76:77]
        buffer_store_dwordx2 v[96:97], v98, s[40:43], s15 offen {st}
        s_mov_b64 exec, -1
        v_mov_b32 v100, -1
        v_mov_b32 v101, -1
        v_mov_b32 v102, -1
        v_mov_b32 v103, -1
        buffer_store_dwordx4 v[100:103], v39, s[40:43], s54 offen {st}
        buffer_store_dwordx4 v[100:103], v39, s[40:43], s12 offen {st}
        buffer_store_dwordx4 v[100:103], v39, s[40:43], s13 offen {st}
        buffer_store_dwordx4 v[100:103], v39, s[40:43], s14 offen {st}
        ''')
        stamp(8)
        if STAMP:
            a(f'''
            s_cmp_lg_u32 s3, 0
            s_cbranch_scc1 {L('nost')}
            s_lshl_b32 s12, s50, 6
            s_lshl_b32 s13, s4, 12
            s_add_u32 s12, s12, s13
            s_add_u32 s12, s12, {FLAGS + 65536}
            v_mov_b32 v35, 0
            ''')
            for i in range(9):
                a(f'v_mov_b32 v34, s{80+i}')
                a(f'buffer_store_dword v34, v35, s[40:43], s12 offen offset:{i*4}')
            a.label(L('nost'))
        a(f'''
        s_mov_b32 s12, s51
        s_mov_b32 s51, s52
        s_mov_b32 s52, s59
        s_mov_b32 s59, s12
        s_xor_b32 s53, s53, {512*KB}
        s_xor_b32 s54, s54, {512*KB}
        s_add_u32 s57, s57, {128*KB}
        s_branch {L('step')}
        ''')
    a.label('L_ch_fin')
    a(f'''
    buffer_store_dwordx2 v[18:19], v3, s[40:43], s58 offen sc0 sc1
    buffer_store_dwordx2 v[26:27], v3, s[40:43], s58 offen offset:512 sc0 sc1
    s_waitcnt vmcnt(0)
    s_barrier
    s_cmp_lg_u32 s3, 0
    s_cbranch_scc1 L_ch_done
    s_mov_b64 exec, 1
    v_mov_b32 v34, 64
    v_mov_b32 v35, 0
    buffer_store_dword v34, v35, s[40:43], s72 offen {CO}
    s_branch L_ch_done
    ''')
    a.label('L_w_entry')
    a('''
    s_load_dwordx2 s[10:11], s[0:1], 0
    s_load_dwordx2 s[12:13], s[0:1], 88
    s_waitcnt lgkmcnt(0)
    ''')
    srd(a, 84, 10, 2048 * 512 * 2)
    srd(a, 88, 12, 2048 * 512 * 2)
    a.label('L_w_loop')
    a(f'''
    s_barrier
    s_cmp_lg_u32 s3, 0
    s_cbranch_scc1 L_w_get
    s_mov_b64 exec, 1
    v_mov_b32 v10, 1
    v_mov_b32 v11, 64
    buffer_atomic_add v10, v11, s[44:47], 0 offen sc0 sc1
    v_mov_b32 v11, {ROLE + 4}
    s_waitcnt vmcnt(0)
    ds_write_b32 v11, v10
    s_waitcnt lgkmcnt(0)
    s_mov_b64 exec, -1
    ''')
    a.label('L_w_get')
    a(f'''
    s_barrier
    v_mov_b32 v11, {ROLE + 4}
    ds_read_b32 v10, v11
    v_and_b32 v6, 63, v0
    v_lshlrev_b32 v1, 4, v6
    v_lshlrev_b32 v3, 3, v6
    v_and_b32 v8, 15, v6
    v_lshrrev_b32 v9, 4, v6
    s_waitcnt lgkmcnt(0)
    v_readfirstlane_b32 s2, v10
    s_cmp_ge_u32 s2, {NTASK}
    s_cbranch_scc1 L_ch_done
    s_cmp_ge_u32 s2, 992
    s_cbranch_scc1 L_w_t3
    s_cmp_ge_u32 s2, 512
    s_cbranch_scc1 L_w_t2
    s_lshr_b32 s5, s2, 5
    s_and_b32 s4, s2, 31
    s_add_u32 s4, s4, 16
    s_branch L_w_g1
    ''')
    a.label('L_w_t2')
    a('''
    s_sub_u32 s6, s2, 512
    s_mul_i32 s5, s6, 2185
    s_lshr_b32 s5, s5, 16            ; tb
    s_mul_i32 s7, s5, 30
    s_sub_u32 s4, s6, s7             ; r
    s_add_u32 s7, s4, 32
    s_cmp_lt_u32 s4, 16
    s_cselect_b32 s4, s4, s7
    ''')
    a.label('L_w_g1')
    a('s_mov_b32 s92, s4')
    a('s_mov_b32 s93, s5')
    k_gemm1.gemm1_body(a, ST=CO)
    a(f'''
    s_waitcnt vmcnt(0)
    s_barrier
    s_cmp_lg_u32 s3, 0
    s_cbranch_scc1 L_w_loop
    s_lshl_b32 s6, s93, 6
    s_add_u32 s6, s6, s92
    s_lshl_b32 s6, s6, 2
    s_add_u32 s6, s6, {TILEF}
    s_mov_b64 exec, 1
    v_mov_b32 v10, 1
    v_mov_b32 v11, 0
    buffer_store_dword v10, v11, s[40:43], s6 offen {CO}
    s_mov_b64 exec, -1
    s_branch L_w_loop
    ''')

    def wpoll(lbl, nl):
        a(f'''
        s_mov_b64 exec, {(1 << nl) - 1}
        s_mov_b32 s19, {SPIN}
        ''')
        a.label(lbl + '_loop')
        a(f'''
        buffer_load_dword v12, v10, s[40:43], 0 offen {CO}
        s_waitcnt vmcnt(0)
        v_cmp_lt_u32 vcc, v12, v11
        s_cbranch_vccz {lbl}_ok
        s_sleep 16
        s_sub_u32 s19, s19, 1
        s_cmp_lg_u32 s19, 0
        s_cbranch_scc1 {lbl}_loop
        s_mov_b64 exec, -1
        s_branch L_ch_done
        ''')
        a.label(lbl + '_ok')
        a('s_mov_b64 exec, -1')

    a.label('L_w_t3')
    a(f'''
    s_sub_u32 s6, s2, 992
    s_lshr_b32 s92, s6, 5            ; sp
    s_and_b32 s7, s6, 31             ; r
    s_cmp_ge_u32 s7, 16
    s_cbranch_scc1 L_w_g2
    s_lshr_b32 s5, s7, 3
    s_lshl_b32 s6, s92, 1
    s_add_u32 s5, s5, s6             ; seg
    s_and_b32 s6, s7, 7
    s_lshl_b32 s6, s6, 2
    s_add_u32 s6, s6, s3             ; h
    s_lshr_b32 s10, s5, 2            ; tb
    s_lshl_b32 s10, s10, 6
    s_lshr_b32 s11, s6, 1
    s_add_u32 s10, s10, s11
    s_lshl_b32 s10, s10, 2
    s_add_u32 s10, s10, {TILEF}
    v_lshlrev_b32 v10, 6, v6
    v_add_u32 v10, s10, v10
    s_lshl_b32 s10, s6, 2
    s_add_u32 s10, s10, {CHF}
    v_mov_b32 v12, s10
    v_mov_b32 v11, 1
    s_add_u32 s10, s5, 1
    v_mov_b32 v13, s10
    v_cmp_eq_u32 vcc, 3, v6
    s_nop 1
    v_cndmask_b32 v10, v10, v12, vcc
    v_cndmask_b32 v11, v11, v13, vcc
    ''')
    wpoll('L_w_pa', 4)
    k_attn.attn_body(a, ST=CO, LD=CO)
    a(f'''
    s_waitcnt vmcnt(0)
    s_barrier
    s_cmp_lg_u32 s3, 0
    s_cbranch_scc1 L_w_loop
    s_lshl_b32 s6, s92, 2
    s_add_u32 s6, s6, {ATC}
    s_mov_b64 exec, 1
    v_mov_b32 v10, 1
    v_mov_b32 v11, 0
    buffer_atomic_add v10, v11, s[40:43], s6 offen sc1
    s_mov_b64 exec, -1
    s_branch L_w_loop
    ''')
    a.label('L_w_g2')
    a(f'''
    s_sub_u32 s4, s7, 16             ; db
    s_mov_b32 s5, s92                ; sp
    s_lshr_b32 s10, s92, 1
    s_lshl_b32 s10, s10, 8
    s_add_u32 s10, s10, {TILEF + 48*4}
    v_lshlrev_b32 v10, 2, v6
    v_add_u32 v10, s10, v10
    s_lshl_b32 s10, s92, 2
    s_add_u32 s10, s10, {ATC}
    v_mov_b32 v12, s10
    v_mov_b32 v11, 1
    v_mov_b32 v13, 16
    v_cmp_eq_u32 vcc, 14, v6
    s_nop 1
    v_cndmask_b32 v10, v10, v12, vcc
    v_cndmask_b32 v11, v11, v13, vcc
    ''')
    wpoll('L_w_pg', 15)
    k_gemm2b.gemm2_body(a, LD=CO)
    a('s_branch L_w_loop')
    a.label('L_ch_done')
    rstamp(3)
    a.label('L_ch_end')
    a('s_endpgm')
    return kernel_desc(name, 256, 100, accum=256, nfv=512)
```

```python
from common import *
import os
import k_gemm1, k_attn, k_gemm2, k_gemm2b
NG2 = 32 // k_gemm2b.ND

TILEF = FLAGS
CHF = FLAGS + 4096
ATC = FLAGS + 4352
NTASK = 992 + 32 * (16 + NG2)
CO = 'sc0 sc1'

CH_WGS = 256
SCR = 128 * KB
OFR = 134 * KB
MEML = 136 * KB
PFB = 144 * KB
ROLE = 133 * KB + 1000
CH_LDS = 160 * KB
SPIN = 1 << 20
STAMP = int(os.environ.get('STAMP', '0'))
POLLMODE = int(os.environ.get('POLLMODE', '1'))
FORCE_SLOW = int(os.environ.get('FORCE_SLOW', '0'))


class LdsQ:
    def __init__(self, a):
        self.a = a
        self.order = []
        self.done = -1

    def issue(self, tag, text):
        self.a(text)
        self.order.append(tag)

    def need(self, tag):
        i = self.order.index(tag)
        if i <= self.done:
            return
        n = len(self.order) - 1 - i
        self.a(f's_waitcnt lgkmcnt({min(n, 15)})')
        self.done = i


def gen_chain(a):
    def rstamp(i):
        if STAMP:
            a(f'''
            s_memrealtime s[96:97]
            s_waitcnt lgkmcnt(0)
            s_lshl_b32 s98, s94, 4
            s_add_u32 s98, s98, {FLAGS + 32768 + i*4}
            v_mov_b32 v34, s96
            v_mov_b32 v35, 0
            buffer_store_dword v34, v35, s[40:43], s98 offen
            ''')

    def stamp(i):
        if STAMP:
            a(f'''
            {'s_memrealtime' if STAMP == 2 else 's_memtime'} s[96:97]
            s_waitcnt lgkmcnt(0)
            s_mov_b32 s{80+i}, s96
            ''')

    name = 'chain_kernel'
    kernel_header(a, name)
    a(f'''
    s_cmp_ge_u32 s2, {CH_WGS}
    s_cbranch_scc1 L_ch_end
    s_load_dwordx2 s[8:9], s[0:1], 104
    s_load_dwordx2 s[10:11], s[0:1], 96
    s_mov_b32 s94, s2
    v_lshrrev_b32 v2, 6, v0
    v_and_b32 v6, 63, v0             ; lane
    v_lshlrev_b32 v1, 4, v6          ; lane*16
    v_readfirstlane_b32 s3, v2       ; wave
    v_lshlrev_b32 v3, 3, v6          ; lane*8
    s_waitcnt lgkmcnt(0)
    ''')
    srd(a, 40, 8, WS_BYTES)
    srd(a, 44, 10, 256)
    rstamp(0)
    a(f'''
    s_cmp_lg_u32 s3, 0
    s_cbranch_scc1 L_ch_role_wait
    s_getreg_b32 s12, hwreg(HW_REG_XCC_ID)
    s_and_b32 s12, s12, 7
    s_mov_b64 exec, 1
    v_mov_b32 v10, 1
    s_lshl_b32 s13, s12, 2
    v_mov_b32 v11, s13
    v_mov_b32 v12, 1
    v_mov_b32 v13, 32
    v_mov_b32 v16, 36
    buffer_atomic_add v10, v11, s[44:47], 0 offen sc0 sc1
    buffer_atomic_add v12, v13, s[44:47], 0 offen sc0 sc1
    s_waitcnt vmcnt(0)
    v_readfirstlane_b32 s13, v10
    v_readfirstlane_b32 s14, v12
    s_add_u32 s15, s12, 1
    s_cmp_lg_u32 s13, {31 if not FORCE_SLOW else 9999}
    s_cbranch_scc1 L_ch_role_poll
    v_mov_b32 v14, s15
    v_mov_b32 v15, 0
    buffer_atomic_cmpswap v[14:15], v16, s[44:47], 0 offen sc1
    s_waitcnt vmcnt(0)
    ''')
    a.label('L_ch_role_poll')
    a(f's_mov_b32 s19, {SPIN}')
    a.label('L_ch_role_loop')
    a(f'''
    buffer_load_dwordx2 v[18:19], v13, s[44:47], 0 offen sc0 sc1
    s_waitcnt vmcnt(0)
    v_readfirstlane_b32 s16, v18     ; count
    v_readfirstlane_b32 s17, v19     ; winner
    s_cmp_lg_u32 s17, 0
    s_cbranch_scc1 L_ch_role_dec
    s_sub_u32 s19, s19, 1
    s_cmp_eq_u32 s19, 0
    s_cbranch_scc1 L_ch_role_dec
    s_cmp_lt_u32 s16, {CH_WGS}
    s_cbranch_scc1 L_ch_role_loop
    v_mov_b32 v14, 100
    v_mov_b32 v15, 0
    buffer_atomic_cmpswap v[14:15], v16, s[44:47], 0 offen sc1
    s_waitcnt vmcnt(0)
    s_branch L_ch_role_loop
    ''')
    a.label('L_ch_role_dec')
    a(f'''
    s_mov_b32 s18, 0xffff
    s_cmp_eq_u32 s17, 100
    s_cbranch_scc0 L_ch_role_fast
    s_or_b32 s20, s14, 0x100
    s_cmp_lt_u32 s14, 32
    s_cselect_b32 s18, s20, s18
    s_branch L_ch_role_wr
    ''')
    a.label('L_ch_role_fast')
    a('''
    s_cmp_lg_u32 s17, s15
    s_cbranch_scc1 L_ch_role_wr
    s_cmp_lt_u32 s13, 32
    s_cselect_b32 s18, s13, s18
    ''')
    a.label('L_ch_role_wr')
    a(f'''
    v_mov_b32 v10, s18
    v_mov_b32 v11, {ROLE}
    ds_write_b32 v11, v10
    s_waitcnt lgkmcnt(0)
    s_mov_b64 exec, -1
    ''')
    a.label('L_ch_role_wait')
    a(f'''
    s_barrier
    v_mov_b32 v11, {ROLE}
    ds_read_b32 v10, v11
    s_waitcnt lgkmcnt(0)
    v_readfirstlane_b32 s18, v10
    s_cmp_eq_u32 s18, 0xffff
    s_cbranch_scc1 L_w_entry
    s_and_b32 s4, s18, 0xff          ; h
    s_lshr_b32 s5, s18, 8            ; mode
    ''')
    a(f'''
    s_lshl_b32 s6, s4, 3
    s_lshl_b32 s7, s3, 1
    s_add_u32 s6, s6, s7             ; h*8+2w
    s_lshl_b32 s6, s6, 14
    s_add_u32 s6, s6, {WQKV}
    ''')
    for ti in range(4):
        which, sub = ti // 2, ti % 2
        for q4 in range(4):
            a(f's_add_u32 s7, s6, {which*256*16*KB + sub*16*KB + q4*4*KB}')
            for j in range(4):
                kt = q4 * 4 + j
                a(f'buffer_load_dwordx4 a[{ti*64+kt*4}:{ti*64+kt*4+3}], v1, s[40:43], s7 offen offset:{j*1024}')
    a(f'''
    s_lshl_b32 s13, s3, 15
    ''')
    for c in range(8):
        a(f'''
        s_add_u32 m0, s13, {c*4096}
        s_add_u32 s7, s6, {2*256*16*KB + c*4*KB}
        ''')
        for j in range(4):
            a(f'buffer_load_dwordx4 v1, s[40:43], s7 offen offset:{j*1024} lds')
    a(f'''
    s_lshl_b32 s6, s3, 20
    s_lshl_b32 s7, s4, 12            ; h*4KB
    s_add_u32 s6, s6, s7
    s_add_u32 s6, s6, {WO}
    s_lshl_b32 s7, s3, 15
    ''')
    for dtl in range(8):
        a(f's_add_u32 s12, s6, {dtl*128*KB}')
        for ks in range(4):
            r = 128 + (dtl * 4 + ks) * 4
            a(f'buffer_load_dwordx4 v[{r}:{r+3}], v1, s[40:43], s12 offen offset:{ks*1024}')
    a(f'''
    v_add_u32 v4, s7, v1
    v_and_b32 v34, 15, v6            ; col
    v_lshrrev_b32 v35, 4, v6         ; g
    v_and_b32 v36, 7, v6             ; col&7
    v_lshl_add_u32 v5, v35, 3, v36
    v_lshlrev_b32 v5, 4, v5
    v_cmp_gt_u32 s[60:61], 8, v34
    v_cmp_gt_u32 s[62:63], 32, v6    ; lanes < 32 (g<2)
    v_cmp_gt_u32 s[76:77], 8, v6     ; lanes < 8
    s_mul_i32 s12, s3, 1536
    s_add_u32 s12, s12, {SCR}
    v_add_u32 v8, s12, v5
    v_lshrrev_b32 v37, 3, v34        ; col>>3
    v_add_u32 v7, s3, v37
    v_add_u32 v7, 1, v7
    v_and_b32 v7, 3, v7              ; (w+1+hi)&3
    v_mul_u32_u24 v7, 1536, v7
    v_add3_u32 v7, v7, v5, 0
    v_add_u32 v7, {SCR}, v7
    v_add_u32 v0, s3, v37
    v_add_u32 v0, 3, v0
    v_and_b32 v0, 3, v0              ; (w+3+hi)&3
    v_mul_u32_u24 v0, 1536, v0
    v_add3_u32 v0, v0, v5, 0
    v_add_u32 v0, {SCR}, v0
    v_add_u32 v9, {OFR}, v5
    s_lshl_b32 s12, s3, 9
    v_add_u32 v2, s12, v9
    s_lshl_b32 s12, s3, 11
    s_add_u32 s12, s12, {MEML}
    v_add_u32 v38, s12, v1
    v_lshrrev_b32 v37, 3, v6
    v_lshlrev_b32 v39, 14, v37
    v_lshl_add_u32 v39, v36, 4, v39
    s_lshl_b32 s12, s3, 7
    v_add_u32 v39, s12, v39
    v_mov_b32 v24, 0
    v_mov_b32 v25, 0
    v_mov_b32 v32, 0
    v_mov_b32 v33, 0
    s_mov_b32 s50, 0
    s_lshl_b32 s12, s3, 11
    s_add_u32 s51, s12, {MEMF}
    s_add_u32 s52, s51, 8192         ; next
    s_add_u32 s59, s51, 16384
    s_lshl_b32 s53, s4, 14
    s_lshl_b32 s12, s3, 12
    s_add_u32 s53, s53, s12
    s_add_u32 s53, s53, {PART}
    s_lshl_b32 s54, s4, 9
    s_add_u32 s54, s54, {PART}
    s_lshl_b32 s12, s4, 2
    s_add_u32 s12, s12, s3
    s_lshl_b32 s12, s12, 10          ; (h*4+w) KB
    s_add_u32 s55, s12, {KF}
    s_add_u32 s57, s12, {KMF}
    s_lshl_b32 s12, s4, 3
    s_lshl_b32 s13, s3, 1
    s_add_u32 s12, s12, s13          ; h*8+2w
    s_lshl_b32 s13, s12, 10
    s_add_u32 s56, s13, {VF}
    s_lshl_b32 s13, s12, 9
    s_add_u32 s58, s13, {VMF}
    s_lshr_b32 s12, s4, 1
    s_lshl_b32 s12, s12, 9
    s_and_b32 s13, s4, 1
    s_lshl_b32 s13, s13, 3
    s_add_u32 s68, s12, s13
    s_lshl_b32 s12, s3, 7
    s_add_u32 s68, s68, s12
    s_lshl_b32 s12, s3, 11
    s_sub_u32 s68, s68, s12
    s_mov_b32 s69, 0x3e0293ee        ; scale*log2e
    ''')
    def kvwait(lbl):
        a(f'''
        s_mov_b64 exec, 3
        v_lshlrev_b32 v34, 6, v6
        s_mov_b32 s19, {SPIN}
        ''')
        a.label(lbl + '_loop')
        a(f'''
        buffer_load_dword v35, v34, s[40:43], s71 offen {CO}
        s_waitcnt vmcnt(0)
        v_cmp_eq_u32 vcc, 0, v35
        s_cbranch_vccz {lbl}_ok
        s_sleep 4
        s_sub_u32 s19, s19, 1
        s_cmp_lg_u32 s19, 0
        s_cbranch_scc1 {lbl}_loop
        s_mov_b64 exec, -1
        s_branch L_ch_done
        ''')
        a.label(lbl + '_ok')
        a('''
        s_mov_b64 exec, -1
        s_add_u32 s71, s71, 256
        ''')

    a(f'''
    s_lshr_b32 s71, s4, 1
    s_lshl_b32 s71, s71, 2
    s_add_u32 s71, s71, {TILEF + 64}
    s_lshl_b32 s72, s4, 2
    s_add_u32 s72, s72, {CHF}
    ''')
    rstamp(1)
    def pf_dma():
        a(f'''
        s_add_u32 s12, s55, {128*KB}
        s_mov_b32 m0, s73
        s_nop 0
        buffer_load_dwordx4 v1, s[40:43], s55 offen {CO} lds
        s_add_u32 m0, s73, 1024
        s_nop 0
        buffer_load_dwordx4 v1, s[40:43], s12 offen {CO} lds
        s_add_u32 m0, s73, 2048
        s_nop 0
        buffer_load_dwordx4 v1, s[40:43], s56 offen {CO} lds
        buffer_load_dwordx4 v1, s[40:43], s56 offen offset:1024 {CO} lds
        s_add_u32 s55, s55, {256*KB}
        s_add_u32 s56, s56, {256*KB}
        ''')

    a(f'''
    s_lshl_b32 s73, s3, 12
    s_add_u32 s73, s73, {PFB}
    ''')
    kvwait('L_ch_kv0')
    rstamp(2)
    pf_dma()
    a(f'''
    s_waitcnt vmcnt(0)
    s_barrier
    s_cmp_eq_u32 s5, 0
    s_cbranch_scc0 L_ch_slow_step
    ''')

    for mode in ('fast', 'slow'):
        ld = os.environ.get('FASTLD', 'sc1') if mode == 'fast' else 'sc0 sc1'
        st = os.environ.get('FASTST', '') if mode == 'fast' else 'sc0 sc1'
        L = lambda x: f'L_ch_{mode}_{x}'

        a.label(L('step'))
        stamp(0)
        def pm_issue(b):
            a(f'''
            buffer_load_dwordx4 v[{b}:{b+3}], v1, s[40:43], s51 offen {ld}
            buffer_load_dwordx4 v[{b+4}:{b+7}], v1, s[40:43], s51 offen offset:1024 {ld}
            ''')

        def pm_check(b, lbl):
            a(f'''
            v_max3_u32 v34, v{b}, v{b+1}, v{b+2}
            v_max3_u32 v35, v{b+3}, v{b+4}, v{b+5}
            v_max3_u32 v34, v34, v{b+6}, v{b+7}
            v_max_u32 v34, v34, v35
            v_cmp_eq_u32 vcc, -1, v34
            s_cbranch_vccz {lbl}
            ''')
        a(f'''
        s_mov_b32 s19, {SPIN}
        s_waitcnt vmcnt(0)
        ''')
        if POLLMODE == 0:
            pm_issue(80)
            a.label(L('pm_loop'))
            pm_issue(88)
            a('s_waitcnt vmcnt(2)')
            pm_check(80, L('pm_okA'))
            pm_issue(80)
            a('s_waitcnt vmcnt(2)')
            pm_check(88, L('pm_okB'))
        elif POLLMODE == 9:
            a.label(L('pm_loop0'))
            a(f'''
            buffer_load_dwordx4 v[80:83], v1, s[40:43], s51 offen {ld}
            s_waitcnt vmcnt(0)
            v_max3_u32 v34, v80, v81, v82
            v_max_u32 v34, v34, v83
            v_cmp_eq_u32 vcc, -1, v34
            s_cbranch_vccz {L('pm_loop')}
            s_sub_u32 s19, s19, 1
            s_cmp_lg_u32 s19, 0
            s_cbranch_scc1 {L('pm_loop0')}
            s_branch L_ch_done
            ''')
            a.label(L('pm_loop'))
            a(f'''
            buffer_load_dwordx4 v[84:87], v1, s[40:43], s51 offen offset:1024 {ld}
            s_waitcnt vmcnt(0)
            v_max3_u32 v34, v84, v85, v86
            v_max_u32 v34, v34, v87
            v_cmp_eq_u32 vcc, -1, v34
            s_cbranch_vccz {L('pm_okA')}
            ''')
        else:
            a.label(L('pm_loop'))
            pm_issue(80)
            a('s_waitcnt vmcnt(0)')
            pm_check(80, L('pm_okA'))
            if POLLMODE >= 2:
                a(f's_sleep {POLLMODE-1}')
        a(f'''
        s_sub_u32 s19, s19, 1
        s_cmp_lg_u32 s19, 0
        s_cbranch_scc1 {L('pm_loop')}
        s_branch L_ch_done
        ''')
        a.label(L('pm_okB'))
        a(f'''
        ds_write_b128 v38, v[88:91]
        ds_write_b128 v38, v[92:95] offset:1024
        s_branch {L('pm_join')}
        ''')
        a.label(L('pm_okA'))
        a(f'''
        ds_write_b128 v38, v[80:83]
        ds_write_b128 v38, v[84:87] offset:1024
        ''')
        a.label(L('pm_join'))
        stamp(1)
        a(f'''
        s_waitcnt lgkmcnt(0)
        s_barrier
        s_cmp_lg_u32 s3, 0
        s_cbranch_scc1 {L('nocf')}
        s_cmp_eq_u32 s50, 0
        s_cbranch_scc1 {L('nocf')}
        s_mov_b64 exec, 1
        s_sub_u32 s12, s50, 1
        v_mov_b32 v34, s12
        v_mov_b32 v35, 0
        buffer_store_dword v34, v35, s[40:43], s72 offen {CO}
        s_mov_b64 exec, -1
        ''')
        a.label(L('nocf'))
        q = LdsQ(a)
        a('v_add_u32 v34, s73, v1')
        q.issue('pf0', 'ds_read_b128 v[10:13], v34')
        q.issue('pf1', 'ds_read_b128 v[14:17], v34 offset:1024')
        q.issue('pf2', 'ds_read_b128 v[20:23], v34 offset:2048')
        q.issue('pf3', 'ds_read_b128 v[28:31], v34 offset:3072')
        a(f'''
        s_cmp_eq_u32 s50, 0
        s_cbranch_scc1 {L('novm')}
        buffer_store_dwordx2 v[18:19], v3, s[40:43], s58 offen sc0 sc1
        buffer_store_dwordx2 v[26:27], v3, s[40:43], s58 offen offset:512 sc0 sc1
        s_add_u32 s58, s58, {128*KB}
        ''')
        a.label(L('novm'))

        def rd_mem(kt):
            b = 96 + (kt % 8) * 4
            q.issue(('m', kt), f'ds_read_b128 v[{b}:{b+3}], v9 offset:{MEML - OFR + kt*512}')

        def rd_wv(kt):
            for t in range(2):
                b = 64 + ((kt % 2) * 2 + t) * 4
                q.issue(('w', kt, t), f'ds_read_b128 v[{b}:{b+3}], v4 offset:{(t*16+kt)*1024}')

        def mf_v(kt):
            m = 96 + (kt % 8) * 4
            for t in range(2):
                q.need(('w', kt, t))
                b = 64 + ((kt % 2) * 2 + t) * 4
                acc = f'v[{56+t*4}:{59+t*4}]'
                a(f'v_mfma_f32_16x16x32_bf16 {acc}, v[{m}:{m+3}], v[{b}:{b+3}], {"0" if kt == 0 else acc}')

        rd_mem(0)
        rd_wv(0)
        rd_mem(1)
        rd_wv(1)
        for kt in range(2, 8):
            rd_mem(kt)
        for kt in range(16):
            q.need(('m', kt))
            if kt == 0:
                stamp(2)
            m = 96 + (kt % 8) * 4
            for ti in range(4):
                acc = f'v[{40+ti*4}:{43+ti*4}]'
                a(f'v_mfma_f32_16x16x32_bf16 {acc}, a[{ti*64+kt*4}:{ti*64+kt*4+3}], v[{m}:{m+3}], {"0" if kt == 0 else acc}')
            if kt < 8:
                mf_v(kt)
                rd_mem(kt + 8)
                rd_wv(kt + 2)
            if kt == 1:
                q.need('pf3')
                a(f'''
                s_and_b32 s12, s50, 3
                s_cmp_lg_u32 s12, 3
                s_cbranch_scc1 {L('nokv')}
                s_cmp_eq_u32 s50, 63
                s_cbranch_scc1 {L('nokv')}
                ''')
                kvwait(L('kv'))
                a.label(L('nokv'))
                pf_dma()
        stamp(3)
        a('''
        s_nop 7
        v_cvt_pk_bf16_f32 v34, v40, v41
        v_cvt_pk_bf16_f32 v35, v42, v43
        v_cvt_pk_bf16_f32 v36, v44, v45
        v_cvt_pk_bf16_f32 v37, v46, v47
        v_cvt_pk_bf16_f32 v40, v48, v49
        v_cvt_pk_bf16_f32 v41, v50, v51
        v_cvt_pk_bf16_f32 v42, v52, v53
        v_cvt_pk_bf16_f32 v43, v54, v55
        s_nop 1
        v_mfma_f32_16x16x32_bf16 v[44:47], v[40:43], v[34:37], 0
        v_mfma_f32_16x16x32_bf16 v[48:51], v[10:13], v[34:37], 0
        v_mfma_f32_16x16x32_bf16 v[52:55], v[14:17], v[34:37], 0
        buffer_store_dwordx4 v[40:43], v1, s[40:43], s57 offen sc0 sc1
        ''')
        mf_v(8)
        rd_wv(10)
        a('s_nop 3')
        q.issue('t0', 'ds_write_b128 v8, v[44:47]')
        q.issue('t1', 'ds_write_b128 v8, v[48:51] offset:512')
        q.issue('t2', 'ds_write_b128 v8, v[52:55] offset:1024')
        mf_v(9)
        rd_wv(11)
        q.need('t2')
        a('s_barrier')
        stamp(4)
        for t in range(3):
            q.issue(('r1', t), f'ds_read_b128 v[{80+t*4}:{83+t*4}], v7 offset:{t*512}')
        for t in range(3):
            q.issue(('r2', t), f'ds_read_b128 v[{44+t*4}:{47+t*4}], v0 offset:{t*512}')
        a('v_mov_b32 v95, 0xf149f2ca')
        mf_v(10)
        rd_wv(12)
        q.need(('r2', 2))
        for i in range(12):
            a(f'v_add_f32 v{44+i}, v{44+i}, v{80+i}')
        mf_v(11)
        rd_wv(13)
        for i in range(12):
            a(f'v_add_f32_dpp v{44+i}, v{44+i}, v{44+i} row_ror:8 row_mask:0xf bank_mask:0xf')
        for i in range(4):
            a(f'v_cndmask_b32 v{44+i}, v95, v{44+i}, s[62:63]')
        mf_v(12)
        rd_wv(14)
        a('''
        v_max3_f32 v92, v48, v49, v50
        v_max3_f32 v93, v51, v52, v53
        v_max3_f32 v94, v54, v55, v44
        v_max3_f32 v92, v92, v45, v46
        v_max3_f32 v93, v93, v94, v47
        v_max_f32 v92, v92, v93
        v_mov_b32 v93, v92
        ''')
        mf_v(13)
        rd_wv(15)
        a('''
        v_permlane32_swap_b32 v92, v93
        v_max_f32 v92, v92, v93
        v_mov_b32 v93, v92
        s_nop 1
        v_permlane16_swap_b32 v92, v93
        v_max_f32 v92, v92, v93
        v_mul_f32 v92, s69, v92
        ''')
        for i in range(12):
            a(f'v_fma_f32 v{44+i}, v{44+i}, s69, -v92')
        mf_v(14)
        for i in range(12):
            a(f'v_exp_f32 v{44+i}, v{44+i}')
            if i == 5:
                mf_v(15)
        a('''
        v_mov_b32 v86, 0
        v_mov_b32 v87, 0
        v_cvt_pk_bf16_f32 v80, v44, v45
        v_cvt_pk_bf16_f32 v81, v46, v47
        v_cvt_pk_bf16_f32 v82, v48, v49
        v_cvt_pk_bf16_f32 v83, v50, v51
        v_cvt_pk_bf16_f32 v84, v52, v53
        v_cvt_pk_bf16_f32 v85, v54, v55
        v_add_f32 v92, v44, v45
        v_add_f32 v93, v46, v47
        v_add_f32 v94, v48, v49
        v_add_f32 v95, v50, v51
        v_cvt_pk_bf16_f32 v18, v56, v57
        v_cvt_pk_bf16_f32 v19, v58, v59
        v_cvt_pk_bf16_f32 v26, v60, v61
        v_cvt_pk_bf16_f32 v27, v62, v63
        v_add_f32 v92, v92, v52
        v_add_f32 v93, v93, v53
        v_mfma_f32_16x16x32_bf16 v[64:67], v[18:21], v[80:83], 0
        v_mfma_f32_16x16x32_bf16 v[68:71], v[26:29], v[80:83], 0
        v_mfma_f32_16x16x32_bf16 v[64:67], v[22:25], v[84:87], v[64:67]
        v_mfma_f32_16x16x32_bf16 v[68:71], v[30:33], v[84:87], v[68:71]
        s_cmp_eq_u32 s50, 63
        s_cbranch_scc1 L_ch_fin
        v_add_f32 v94, v94, v54
        v_add_f32 v95, v95, v55
        v_add_f32 v92, v92, v93
        v_add_f32 v94, v94, v95
        v_add_f32 v92, v92, v94
        v_mov_b32 v93, v92
        s_nop 1
        v_permlane32_swap_b32 v92, v93
        v_add_f32 v92, v92, v93
        v_mov_b32 v93, v92
        s_nop 1
        v_permlane16_swap_b32 v92, v93
        v_add_f32 v92, v92, v93
        v_rcp_f32 v92, v92
        s_nop 0
        ''')
        for i in range(8):
            a(f'v_mul_f32 v{64+i}, v{64+i}, v92')
        a('''
        v_cvt_pk_bf16_f32 v72, v64, v65
        v_cvt_pk_bf16_f32 v73, v66, v67
        v_cvt_pk_bf16_f32 v74, v68, v69
        v_cvt_pk_bf16_f32 v75, v70, v71
        ds_write_b128 v2, v[72:75]
        s_waitcnt lgkmcnt(0)
        s_barrier
        ''')
        stamp(5)
        for ks in range(4):
            a(f'ds_read_b128 v[{96+ks*4}:{99+ks*4}], v9 offset:{ks*512}')
        a(f'''
        v_bfe_u32 v37, v6, 3, 1
        v_lshl_add_u32 v37, v37, 9, v5
        v_mov_b32 v120, -1
        v_mov_b32 v121, -1
        v_lshlrev_b32 v122, 4, v6
        s_add_u32 s12, s59, s68
        s_mov_b64 exec, s[76:77]
        buffer_store_dwordx2 v[120:121], v122, s[40:43], s12 offen {st}
        s_mov_b64 exec, -1
        ''')
        accs = [40, 44, 48, 52, 56, 60, 112, 116]

        def pstore(pr):
            d0, d1 = accs[2 * pr], accs[2 * pr + 1]
            for r in range(4):
                a(f'v_cndmask_b32 v{d0+r}, v{d1+r}, v{d0+r}, s[60:61]')
            a(f'buffer_store_dwordx4 v[{d0}:{d0+3}], v37, s[40:43], s53 offen offset:{pr*1024} {st}')
        a('s_waitcnt lgkmcnt(0)')
        for dtl in range(8):
            acc = f'v[{accs[dtl]}:{accs[dtl]+3}]'
            for ks in range(4):
                b = 128 + (dtl * 4 + ks) * 4
                a(f'v_mfma_f32_16x16x32_bf16 {acc}, v[{b}:{b+3}], v[{96+ks*4}:{99+ks*4}], {"0" if ks == 0 else acc}')
            if dtl in (3, 5, 7):
                pstore((dtl - 3) // 2)
        a('s_nop 7')
        pstore(3)
        stamp(6)
        a(f'''
        s_add_u32 s50, s50, 1
        s_add_u32 s12, s54, {128*KB}
        s_add_u32 s13, s54, {256*KB}
        s_add_u32 s14, s54, {384*KB}
        s_mov_b32 s19, {SPIN}
        ''')
        def pr_issue(b):
            for i, so in enumerate(('s54', 's12', 's13', 's14')):
                a(f'buffer_load_dwordx4 v[{b+i*4}:{b+i*4+3}], v39, s[40:43], {so} offen {ld}')

        def pr_check(b, lbl):
            a(f'''
            v_max3_u32 v34, v{b}, v{b+1}, v{b+2}
            v_max3_u32 v35, v{b+3}, v{b+4}, v{b+5}
            v_max3_u32 v36, v{b+6}, v{b+7}, v{b+8}
            v_max3_u32 v37, v{b+9}, v{b+10}, v{b+11}
            v_max3_u32 v34, v34, v{b+12}, v{b+13}
            v_max3_u32 v35, v35, v{b+14}, v{b+15}
            v_max3_u32 v34, v34, v36, v37
            v_max_u32 v34, v34, v35
            v_cmp_eq_u32 vcc, -1, v34
            s_cbranch_vccz {lbl}
            ''')
        if POLLMODE == 0:
            pr_issue(64)
            a.label(L('pr_loop'))
            pr_issue(80)
            a('s_waitcnt vmcnt(4)')
            pr_check(64, L('pr_okA'))
            pr_issue(64)
            a('s_waitcnt vmcnt(4)')
            pr_check(80, L('pr_okB'))
        elif POLLMODE == 9:
            for gi, so in enumerate(('s54', 's12', 's13', 's14')):
                b = 64 + gi * 4
                lbl = L(f'pr_l{gi}') if gi < 3 else L('pr_loop')
                nxt = L(f'pr_l{gi+1}') if gi < 2 else (L('pr_loop') if gi == 2 else L('pr_okA'))
                a.label(lbl)
                a(f'''
                buffer_load_dwordx4 v[{b}:{b+3}], v39, s[40:43], {so} offen {ld}
                s_waitcnt vmcnt(0)
                v_max3_u32 v34, v{b}, v{b+1}, v{b+2}
                v_max_u32 v34, v34, v{b+3}
                v_cmp_eq_u32 vcc, -1, v34
                s_cbranch_vccz {nxt}
                ''')
                if gi < 3:
                    a(f'''
                    s_sub_u32 s19, s19, 1
                    s_cmp_lg_u32 s19, 0
                    s_cbranch_scc1 {lbl}
                    s_branch L_ch_done
                    ''')
        else:
            a.label(L('pr_loop'))
            pr_issue(64)
            a('s_waitcnt vmcnt(0)')
            pr_check(64, L('pr_okA'))
            if POLLMODE >= 2:
                a(f's_sleep {POLLMODE-1}')
        a(f'''
        s_sub_u32 s19, s19, 1
        s_cmp_lg_u32 s19, 0
        s_cbranch_scc1 {L('pr_loop')}
        s_branch L_ch_done
        ''')
        a.label(L('pr_okB'))
        for r in range(4):
            a(f'v_add_f32 v{96+r}, v{80+r}, v{84+r}')
            a(f'v_add_f32 v{100+r}, v{88+r}, v{92+r}')
        a(f's_branch {L("pr_join")}')
        a.label(L('pr_okA'))
        for r in range(4):
            a(f'v_add_f32 v{96+r}, v{64+r}, v{68+r}')
            a(f'v_add_f32 v{100+r}, v{72+r}, v{76+r}')
        a.label(L('pr_join'))
        stamp(7)
        for r in range(4):
            a(f'v_add_f32 v{96+r}, v{96+r}, v{100+r}')
        a('s_nop 1')
        for r in range(4):
            a(f'v_add_f32_dpp v{96+r}, v{96+r}, v{96+r} row_ror:8 row_mask:0xf bank_mask:0xf')
        for r in range(4):
            a(f'v_mov_b32 v{100+r}, v{96+r}')
        a('s_nop 0')
        for r in range(4):
            a(f'v_permlane32_swap_b32 v{96+r}, v{100+r}')
        for r in range(4):
            a(f'v_add_f32 v{96+r}, v{96+r}, v{100+r}')
        for r in range(4):
            a(f'v_mov_b32 v{100+r}, v{96+r}')
        a('s_nop 0')
        for r in range(4):
            a(f'v_permlane16_swap_b32 v{96+r}, v{100+r}')
        for r in range(4):
            a(f'v_add_f32 v{96+r}, v{96+r}, v{100+r}')
        a(f'''
        v_cvt_pk_bf16_f32 v96, v96, v97
        v_cvt_pk_bf16_f32 v97, v98, v99
        v_lshlrev_b32 v98, 4, v6
        s_add_u32 s15, s52, s68
        s_mov_b64 exec, s[76:77]
        buffer_store_dwordx2 v[96:97], v98, s[40:43], s15 offen {st}
        s_mov_b64 exec, -1
        v_mov_b32 v100, -1
        v_mov_b32 v101, -1
        v_mov_b32 v102, -1
        v_mov_b32 v103, -1
        buffer_store_dwordx4 v[100:103], v39, s[40:43], s54 offen {st}
        buffer_store_dwordx4 v[100:103], v39, s[40:43], s12 offen {st}
        buffer_store_dwordx4 v[100:103], v39, s[40:43], s13 offen {st}
        buffer_store_dwordx4 v[100:103], v39, s[40:43], s14 offen {st}
        ''')
        stamp(8)
        if STAMP:
            a(f'''
            s_cmp_lg_u32 s3, 0
            s_cbranch_scc1 {L('nost')}
            s_lshl_b32 s12, s50, 6
            s_lshl_b32 s13, s4, 12
            s_add_u32 s12, s12, s13
            s_add_u32 s12, s12, {FLAGS + 65536}
            v_mov_b32 v35, 0
            ''')
            for i in range(9):
                a(f'v_mov_b32 v34, s{80+i}')
                a(f'buffer_store_dword v34, v35, s[40:43], s12 offen offset:{i*4}')
            a.label(L('nost'))
        a(f'''
        s_mov_b32 s12, s51
        s_mov_b32 s51, s52
        s_mov_b32 s52, s59
        s_mov_b32 s59, s12
        s_xor_b32 s53, s53, {512*KB}
        s_xor_b32 s54, s54, {512*KB}
        s_add_u32 s57, s57, {128*KB}
        s_branch {L('step')}
        ''')
    a.label('L_ch_fin')
    a(f'''
    buffer_store_dwordx2 v[18:19], v3, s[40:43], s58 offen sc0 sc1
    buffer_store_dwordx2 v[26:27], v3, s[40:43], s58 offen offset:512 sc0 sc1
    s_waitcnt vmcnt(0)
    s_barrier
    s_cmp_lg_u32 s3, 0
    s_cbranch_scc1 L_ch_done
    s_mov_b64 exec, 1
    v_mov_b32 v34, 64
    v_mov_b32 v35, 0
    buffer_store_dword v34, v35, s[40:43], s72 offen {CO}
    s_branch L_ch_done
    ''')
    a.label('L_w_entry')
    a('''
    s_load_dwordx2 s[10:11], s[0:1], 0
    s_load_dwordx2 s[12:13], s[0:1], 88
    s_waitcnt lgkmcnt(0)
    ''')
    srd(a, 84, 10, 2048 * 512 * 2)
    srd(a, 88, 12, 2048 * 512 * 2)
    a.label('L_w_loop')
    a(f'''
    s_barrier
    s_cmp_lg_u32 s3, 0
    s_cbranch_scc1 L_w_get
    s_mov_b64 exec, 1
    v_mov_b32 v10, 1
    v_mov_b32 v11, 64
    buffer_atomic_add v10, v11, s[44:47], 0 offen sc0 sc1
    v_mov_b32 v11, {ROLE + 4}
    s_waitcnt vmcnt(0)
    ds_write_b32 v11, v10
    s_waitcnt lgkmcnt(0)
    s_mov_b64 exec, -1
    ''')
    a.label('L_w_get')
    a(f'''
    s_barrier
    v_mov_b32 v11, {ROLE + 4}
    ds_read_b32 v10, v11
    v_and_b32 v6, 63, v0
    v_lshlrev_b32 v1, 4, v6
    v_lshlrev_b32 v3, 3, v6
    v_and_b32 v8, 15, v6
    v_lshrrev_b32 v9, 4, v6
    s_waitcnt lgkmcnt(0)
    v_readfirstlane_b32 s2, v10
    s_cmp_ge_u32 s2, {NTASK}
    s_cbranch_scc1 L_ch_done
    s_cmp_ge_u32 s2, 992
    s_cbranch_scc1 L_w_t3
    s_cmp_ge_u32 s2, 512
    s_cbranch_scc1 L_w_t2
    s_lshr_b32 s5, s2, 5
    s_and_b32 s4, s2, 31
    s_add_u32 s4, s4, 16
    s_branch L_w_g1
    ''')
    a.label('L_w_t2')
    a('''
    s_sub_u32 s6, s2, 512
    s_mul_i32 s5, s6, 2185
    s_lshr_b32 s5, s5, 16            ; tb
    s_mul_i32 s7, s5, 30
    s_sub_u32 s4, s6, s7             ; r
    s_add_u32 s7, s4, 32
    s_cmp_lt_u32 s4, 16
    s_cselect_b32 s4, s4, s7
    ''')
    a.label('L_w_g1')
    a('s_mov_b32 s92, s4')
    a('s_mov_b32 s93, s5')
    k_gemm1.gemm1_body(a, ST=CO)
    a(f'''
    s_waitcnt vmcnt(0)
    s_barrier
    s_cmp_lg_u32 s3, 0
    s_cbranch_scc1 L_w_loop
    s_lshl_b32 s6, s93, 6
    s_add_u32 s6, s6, s92
    s_lshl_b32 s6, s6, 2
    s_add_u32 s6, s6, {TILEF}
    s_mov_b64 exec, 1
    v_mov_b32 v10, 1
    v_mov_b32 v11, 0
    buffer_store_dword v10, v11, s[40:43], s6 offen {CO}
    s_mov_b64 exec, -1
    s_branch L_w_loop
    ''')

    def wpoll(lbl, nl):
        a(f'''
        s_mov_b64 exec, {(1 << nl) - 1}
        s_mov_b32 s19, {SPIN}
        ''')
        a.label(lbl + '_loop')
        a(f'''
        buffer_load_dword v12, v10, s[40:43], 0 offen {CO}
        s_waitcnt vmcnt(0)
        v_cmp_lt_u32 vcc, v12, v11
        s_cbranch_vccz {lbl}_ok
        s_sleep 16
        s_sub_u32 s19, s19, 1
        s_cmp_lg_u32 s19, 0
        s_cbranch_scc1 {lbl}_loop
        s_mov_b64 exec, -1
        s_branch L_ch_done
        ''')
        a.label(lbl + '_ok')
        a('s_mov_b64 exec, -1')

    a.label('L_w_t3')
    a(f'''
    s_sub_u32 s6, s2, 992
    s_lshr_b32 s92, s6, 5            ; sp
    s_and_b32 s7, s6, 31             ; r
    s_cmp_ge_u32 s7, 16
    s_cbranch_scc1 L_w_g2
    s_lshr_b32 s5, s7, 3
    s_lshl_b32 s6, s92, 1
    s_add_u32 s5, s5, s6             ; seg
    s_and_b32 s6, s7, 7
    s_lshl_b32 s6, s6, 2
    s_add_u32 s6, s6, s3             ; h
    s_lshr_b32 s10, s5, 2            ; tb
    s_lshl_b32 s10, s10, 6
    s_lshr_b32 s11, s6, 1
    s_add_u32 s10, s10, s11
    s_lshl_b32 s10, s10, 2
    s_add_u32 s10, s10, {TILEF}
    v_lshlrev_b32 v10, 6, v6
    v_add_u32 v10, s10, v10
    s_lshl_b32 s10, s6, 2
    s_add_u32 s10, s10, {CHF}
    v_mov_b32 v12, s10
    v_mov_b32 v11, 1
    s_add_u32 s10, s5, 1
    v_mov_b32 v13, s10
    v_cmp_eq_u32 vcc, 3, v6
    s_nop 1
    v_cndmask_b32 v10, v10, v12, vcc
    v_cndmask_b32 v11, v11, v13, vcc
    ''')
    wpoll('L_w_pa', 4)
    k_attn.attn_body(a, ST=CO, LD=CO)
    a(f'''
    s_waitcnt vmcnt(0)
    s_barrier
    s_cmp_lg_u32 s3, 0
    s_cbranch_scc1 L_w_loop
    s_lshl_b32 s6, s92, 2
    s_add_u32 s6, s6, {ATC}
    s_mov_b64 exec, 1
    v_mov_b32 v10, 1
    v_mov_b32 v11, 0
    buffer_atomic_add v10, v11, s[40:43], s6 offen sc1
    s_mov_b64 exec, -1
    s_branch L_w_loop
    ''')
    a.label('L_w_g2')
    a(f'''
    s_sub_u32 s4, s7, 16             ; db
    s_mov_b32 s5, s92                ; sp
    s_lshr_b32 s10, s92, 1
    s_lshl_b32 s10, s10, 8
    s_add_u32 s10, s10, {TILEF + 48*4}
    v_lshlrev_b32 v10, 2, v6
    v_add_u32 v10, s10, v10
    s_lshl_b32 s10, s92, 2
    s_add_u32 s10, s10, {ATC}
    v_mov_b32 v12, s10
    v_mov_b32 v11, 1
    v_mov_b32 v13, 16
    v_cmp_eq_u32 vcc, 14, v6
    s_nop 1
    v_cndmask_b32 v10, v10, v12, vcc
    v_cndmask_b32 v11, v11, v13, vcc
    ''')
    wpoll('L_w_pg', 15)
    k_gemm2b.gemm2_body(a, LD=CO)
    a('s_branch L_w_loop')
    a.label('L_ch_done')
    rstamp(3)
    a.label('L_ch_end')
    a('s_endpgm')
    return kernel_desc(name, 256, 100, accum=256, nfv=512)
```

```python
from common import *
import os
import k_gemm1, k_attn, k_gemm2, k_gemm2b
NG2 = 32 // k_gemm2b.ND

TILEF = FLAGS
CHF = FLAGS + 4096
ATC = FLAGS + 4352
NTASK = 992 + 32 * (16 + NG2)
CO = 'sc0 sc1'

CH_WGS = 256
SCR = 128 * KB
OFR = 134 * KB
MEML = 136 * KB
PFB = 144 * KB
ROLE = 133 * KB + 1000
CH_LDS = 160 * KB
SPIN = 1 << 20
STAMP = int(os.environ.get('STAMP', '0'))
POLLMODE = int(os.environ.get('POLLMODE', '1'))
FORCE_SLOW = int(os.environ.get('FORCE_SLOW', '0'))


class LdsQ:
    def __init__(self, a):
        self.a = a
        self.order = []
        self.done = -1

    def issue(self, tag, text):
        self.a(text)
        self.order.append(tag)

    def need(self, tag):
        i = self.order.index(tag)
        if i <= self.done:
            return
        n = len(self.order) - 1 - i
        self.a(f's_waitcnt lgkmcnt({min(n, 15)})')
        self.done = i


def gen_chain(a):
    def rstamp(i):
        if STAMP:
            a(f'''
            s_memrealtime s[96:97]
            s_waitcnt lgkmcnt(0)
            s_lshl_b32 s98, s94, 4
            s_add_u32 s98, s98, {FLAGS + 32768 + i*4}
            v_mov_b32 v34, s96
            v_mov_b32 v35, 0
            buffer_store_dword v34, v35, s[40:43], s98 offen
            ''')

    def stamp(i):
        if STAMP:
            a(f'''
            {'s_memrealtime' if STAMP == 2 else 's_memtime'} s[96:97]
            s_waitcnt lgkmcnt(0)
            s_mov_b32 s{80+i}, s96
            ''')

    name = 'chain_kernel'
    kernel_header(a, name)
    a(f'''
    s_cmp_ge_u32 s2, {CH_WGS}
    s_cbranch_scc1 L_ch_end
    s_load_dwordx2 s[8:9], s[0:1], 104
    s_load_dwordx2 s[10:11], s[0:1], 96
    s_mov_b32 s94, s2
    v_lshrrev_b32 v2, 6, v0
    v_and_b32 v6, 63, v0             ; lane
    v_lshlrev_b32 v1, 4, v6          ; lane*16
    v_readfirstlane_b32 s3, v2       ; wave
    v_lshlrev_b32 v3, 3, v6          ; lane*8
    s_waitcnt lgkmcnt(0)
    ''')
    srd(a, 40, 8, WS_BYTES)
    srd(a, 44, 10, 256)
    rstamp(0)
    a(f'''
    s_cmp_lg_u32 s3, 0
    s_cbranch_scc1 L_ch_role_wait
    s_getreg_b32 s12, hwreg(HW_REG_XCC_ID)
    s_and_b32 s12, s12, 7
    s_mov_b64 exec, 1
    v_mov_b32 v10, 1
    s_lshl_b32 s13, s12, 2
    v_mov_b32 v11, s13
    v_mov_b32 v12, 1
    v_mov_b32 v13, 32
    v_mov_b32 v16, 36
    buffer_atomic_add v10, v11, s[44:47], 0 offen sc0 sc1
    buffer_atomic_add v12, v13, s[44:47], 0 offen sc0 sc1
    s_waitcnt vmcnt(0)
    v_readfirstlane_b32 s13, v10
    v_readfirstlane_b32 s14, v12
    s_add_u32 s15, s12, 1
    s_cmp_lg_u32 s13, {31 if not FORCE_SLOW else 9999}
    s_cbranch_scc1 L_ch_role_poll
    v_mov_b32 v14, s15
    v_mov_b32 v15, 0
    buffer_atomic_cmpswap v[14:15], v16, s[44:47], 0 offen sc1
    s_waitcnt vmcnt(0)
    ''')
    a.label('L_ch_role_poll')
    a(f's_mov_b32 s19, {SPIN}')
    a.label('L_ch_role_loop')
    a(f'''
    buffer_load_dwordx2 v[18:19], v13, s[44:47], 0 offen sc0 sc1
    s_waitcnt vmcnt(0)
    v_readfirstlane_b32 s16, v18     ; count
    v_readfirstlane_b32 s17, v19     ; winner
    s_cmp_lg_u32 s17, 0
    s_cbranch_scc1 L_ch_role_dec
    s_sub_u32 s19, s19, 1
    s_cmp_eq_u32 s19, 0
    s_cbranch_scc1 L_ch_role_dec
    s_cmp_lt_u32 s16, {CH_WGS}
    s_cbranch_scc1 L_ch_role_loop
    v_mov_b32 v14, 100
    v_mov_b32 v15, 0
    buffer_atomic_cmpswap v[14:15], v16, s[44:47], 0 offen sc1
    s_waitcnt vmcnt(0)
    s_branch L_ch_role_loop
    ''')
    a.label('L_ch_role_dec')
    a(f'''
    s_mov_b32 s18, 0xffff
    s_cmp_eq_u32 s17, 100
    s_cbranch_scc0 L_ch_role_fast
    s_or_b32 s20, s14, 0x100
    s_cmp_lt_u32 s14, 32
    s_cselect_b32 s18, s20, s18
    s_branch L_ch_role_wr
    ''')
    a.label('L_ch_role_fast')
    a('''
    s_cmp_lg_u32 s17, s15
    s_cbranch_scc1 L_ch_role_wr
    s_cmp_lt_u32 s13, 32
    s_cselect_b32 s18, s13, s18
    ''')
    a.label('L_ch_role_wr')
    a(f'''
    v_mov_b32 v10, s18
    v_mov_b32 v11, {ROLE}
    ds_write_b32 v11, v10
    s_waitcnt lgkmcnt(0)
    s_mov_b64 exec, -1
    ''')
    a.label('L_ch_role_wait')
    a(f'''
    s_barrier
    v_mov_b32 v11, {ROLE}
    ds_read_b32 v10, v11
    s_waitcnt lgkmcnt(0)
    v_readfirstlane_b32 s18, v10
    s_cmp_eq_u32 s18, 0xffff
    s_cbranch_scc1 L_w_entry
    s_and_b32 s4, s18, 0xff          ; h
    s_lshr_b32 s5, s18, 8            ; mode
    ''')
    a(f'''
    s_lshl_b32 s6, s4, 3
    s_lshl_b32 s7, s3, 1
    s_add_u32 s6, s6, s7             ; h*8+2w
    s_lshl_b32 s6, s6, 14
    s_add_u32 s6, s6, {WQKV}
    ''')
    for ti in range(4):
        which, sub = ti // 2, ti % 2
        for q4 in range(4):
            a(f's_add_u32 s7, s6, {which*256*16*KB + sub*16*KB + q4*4*KB}')
            for j in range(4):
                kt = q4 * 4 + j
                a(f'buffer_load_dwordx4 a[{ti*64+kt*4}:{ti*64+kt*4+3}], v1, s[40:43], s7 offen offset:{j*1024}')
    a(f'''
    s_lshl_b32 s13, s3, 15
    ''')
    for c in range(8):
        a(f'''
        s_add_u32 m0, s13, {c*4096}
        s_add_u32 s7, s6, {2*256*16*KB + c*4*KB}
        ''')
        for j in range(4):
            a(f'buffer_load_dwordx4 v1, s[40:43], s7 offen offset:{j*1024} lds')
    a(f'''
    s_lshl_b32 s6, s3, 20
    s_lshl_b32 s7, s4, 12            ; h*4KB
    s_add_u32 s6, s6, s7
    s_add_u32 s6, s6, {WO}
    s_lshl_b32 s7, s3, 15
    ''')
    for dtl in range(8):
        a(f's_add_u32 s12, s6, {dtl*128*KB}')
        for ks in range(4):
            r = 128 + (dtl * 4 + ks) * 4
            a(f'buffer_load_dwordx4 v[{r}:{r+3}], v1, s[40:43], s12 offen offset:{ks*1024}')
    a(f'''
    v_add_u32 v4, s7, v1
    v_and_b32 v34, 15, v6            ; col
    v_lshrrev_b32 v35, 4, v6         ; g
    v_and_b32 v36, 7, v6             ; col&7
    v_lshl_add_u32 v5, v35, 3, v36
    v_lshlrev_b32 v5, 4, v5
    v_cmp_gt_u32 s[60:61], 8, v34
    v_cmp_gt_u32 s[62:63], 32, v6    ; lanes < 32 (g<2)
    v_cmp_gt_u32 s[76:77], 8, v6     ; lanes < 8
    s_mul_i32 s12, s3, 1536
    s_add_u32 s12, s12, {SCR}
    v_add_u32 v8, s12, v5
    v_lshrrev_b32 v37, 3, v34        ; col>>3
    v_add_u32 v7, s3, v37
    v_add_u32 v7, 1, v7
    v_and_b32 v7, 3, v7              ; (w+1+hi)&3
    v_mul_u32_u24 v7, 1536, v7
    v_add3_u32 v7, v7, v5, 0
    v_add_u32 v7, {SCR}, v7
    v_add_u32 v0, s3, v37
    v_add_u32 v0, 3, v0
    v_and_b32 v0, 3, v0              ; (w+3+hi)&3
    v_mul_u32_u24 v0, 1536, v0
    v_add3_u32 v0, v0, v5, 0
    v_add_u32 v0, {SCR}, v0
    v_add_u32 v9, {OFR}, v5
    s_lshl_b32 s12, s3, 9
    v_add_u32 v2, s12, v9
    s_lshl_b32 s12, s3, 11
    s_add_u32 s12, s12, {MEML}
    v_add_u32 v38, s12, v1
    v_lshrrev_b32 v37, 3, v6
    v_lshlrev_b32 v39, 14, v37
    v_lshl_add_u32 v39, v36, 4, v39
    s_lshl_b32 s12, s3, 7
    v_add_u32 v39, s12, v39
    v_mov_b32 v24, 0
    v_mov_b32 v25, 0
    v_mov_b32 v32, 0
    v_mov_b32 v33, 0
    s_mov_b32 s50, 0
    s_lshl_b32 s12, s3, 11
    s_add_u32 s51, s12, {MEMF}
    s_add_u32 s52, s51, 8192         ; next
    s_add_u32 s59, s51, 16384
    s_lshl_b32 s53, s4, 14
    s_lshl_b32 s12, s3, 12
    s_add_u32 s53, s53, s12
    s_add_u32 s53, s53, {PART}
    s_lshl_b32 s54, s4, 9
    s_add_u32 s54, s54, {PART}
    s_lshl_b32 s12, s4, 2
    s_add_u32 s12, s12, s3
    s_lshl_b32 s12, s12, 10          ; (h*4+w) KB
    s_add_u32 s55, s12, {KF}
    s_add_u32 s57, s12, {KMF}
    s_lshl_b32 s12, s4, 3
    s_lshl_b32 s13, s3, 1
    s_add_u32 s12, s12, s13          ; h*8+2w
    s_lshl_b32 s13, s12, 10
    s_add_u32 s56, s13, {VF}
    s_lshl_b32 s13, s12, 9
    s_add_u32 s58, s13, {VMF}
    s_lshr_b32 s12, s4, 1
    s_lshl_b32 s12, s12, 9
    s_and_b32 s13, s4, 1
    s_lshl_b32 s13, s13, 3
    s_add_u32 s68, s12, s13
    s_lshl_b32 s12, s3, 7
    s_add_u32 s68, s68, s12
    s_lshl_b32 s12, s3, 11
    s_sub_u32 s68, s68, s12
    s_mov_b32 s69, 0x3e0293ee        ; scale*log2e
    ''')
    def kvwait(lbl):
        a(f'''
        s_mov_b64 exec, 3
        v_lshlrev_b32 v34, 6, v6
        s_mov_b32 s19, {SPIN}
        ''')
        a.label(lbl + '_loop')
        a(f'''
        buffer_load_dword v35, v34, s[40:43], s71 offen {CO}
        s_waitcnt vmcnt(0)
        v_cmp_eq_u32 vcc, 0, v35
        s_cbranch_vccz {lbl}_ok
        s_sleep 4
        s_sub_u32 s19, s19, 1
        s_cmp_lg_u32 s19, 0
        s_cbranch_scc1 {lbl}_loop
        s_mov_b64 exec, -1
        s_branch L_ch_done
        ''')
        a.label(lbl + '_ok')
        a('''
        s_mov_b64 exec, -1
        s_add_u32 s71, s71, 256
        ''')

    a(f'''
    s_lshr_b32 s71, s4, 1
    s_lshl_b32 s71, s71, 2
    s_add_u32 s71, s71, {TILEF + 64}
    s_lshl_b32 s72, s4, 2
    s_add_u32 s72, s72, {CHF}
    ''')
    rstamp(1)
    def pf_dma():
        a(f'''
        s_add_u32 s12, s55, {128*KB}
        s_mov_b32 m0, s73
        s_nop 0
        buffer_load_dwordx4 v1, s[40:43], s55 offen {CO} lds
        s_add_u32 m0, s73, 1024
        s_nop 0
        buffer_load_dwordx4 v1, s[40:43], s12 offen {CO} lds
        s_add_u32 m0, s73, 2048
        s_nop 0
        buffer_load_dwordx4 v1, s[40:43], s56 offen {CO} lds
        buffer_load_dwordx4 v1, s[40:43], s56 offen offset:1024 {CO} lds
        s_add_u32 s55, s55, {256*KB}
        s_add_u32 s56, s56, {256*KB}
        ''')

    a(f'''
    s_lshl_b32 s73, s3, 12
    s_add_u32 s73, s73, {PFB}
    ''')
    kvwait('L_ch_kv0')
    rstamp(2)
    pf_dma()
    a(f'''
    s_waitcnt vmcnt(0)
    s_barrier
    s_cmp_eq_u32 s5, 0
    s_cbranch_scc0 L_ch_slow_step
    ''')

    for mode in ('fast', 'slow'):
        ld = os.environ.get('FASTLD', 'sc1') if mode == 'fast' else 'sc0 sc1'
        st = os.environ.get('FASTST', '') if mode == 'fast' else 'sc0 sc1'
        L = lambda x: f'L_ch_{mode}_{x}'

        a.label(L('step'))
        stamp(0)
        def pm_issue(b):
            a(f'''
            buffer_load_dwordx4 v[{b}:{b+3}], v1, s[40:43], s51 offen {ld}
            buffer_load_dwordx4 v[{b+4}:{b+7}], v1, s[40:43], s51 offen offset:1024 {ld}
            ''')

        def pm_check(b, lbl):
            a(f'''
            v_max3_u32 v34, v{b}, v{b+1}, v{b+2}
            v_max3_u32 v35, v{b+3}, v{b+4}, v{b+5}
            v_max3_u32 v34, v34, v{b+6}, v{b+7}
            v_max_u32 v34, v34, v35
            v_cmp_eq_u32 vcc, -1, v34
            s_cbranch_vccz {lbl}
            ''')
        a(f'''
        s_mov_b32 s19, {SPIN}
        s_waitcnt vmcnt(0)
        ''')
        if POLLMODE == 0:
            pm_issue(80)
            a.label(L('pm_loop'))
            pm_issue(88)
            a('s_waitcnt vmcnt(2)')
            pm_check(80, L('pm_okA'))
            pm_issue(80)
            a('s_waitcnt vmcnt(2)')
            pm_check(88, L('pm_okB'))
        elif POLLMODE == 9:
            a.label(L('pm_loop0'))
            a(f'''
            buffer_load_dwordx4 v[80:83], v1, s[40:43], s51 offen {ld}
            s_waitcnt vmcnt(0)
            v_max3_u32 v34, v80, v81, v82
            v_max_u32 v34, v34, v83
            v_cmp_eq_u32 vcc, -1, v34
            s_cbranch_vccz {L('pm_loop')}
            s_sub_u32 s19, s19, 1
            s_cmp_lg_u32 s19, 0
            s_cbranch_scc1 {L('pm_loop0')}
            s_branch L_ch_done
            ''')
            a.label(L('pm_loop'))
            a(f'''
            buffer_load_dwordx4 v[84:87], v1, s[40:43], s51 offen offset:1024 {ld}
            s_waitcnt vmcnt(0)
            v_max3_u32 v34, v84, v85, v86
            v_max_u32 v34, v34, v87
            v_cmp_eq_u32 vcc, -1, v34
            s_cbranch_vccz {L('pm_okA')}
            ''')
        else:
            a.label(L('pm_loop'))
            pm_issue(80)
            a('s_waitcnt vmcnt(0)')
            pm_check(80, L('pm_okA'))
            if POLLMODE >= 2:
                a(f's_sleep {POLLMODE-1}')
        a(f'''
        s_sub_u32 s19, s19, 1
        s_cmp_lg_u32 s19, 0
        s_cbranch_scc1 {L('pm_loop')}
        s_branch L_ch_done
        ''')
        a.label(L('pm_okB'))
        a(f'''
        ds_write_b128 v38, v[88:91]
        ds_write_b128 v38, v[92:95] offset:1024
        s_branch {L('pm_join')}
        ''')
        a.label(L('pm_okA'))
        a(f'''
        ds_write_b128 v38, v[80:83]
        ds_write_b128 v38, v[84:87] offset:1024
        ''')
        a.label(L('pm_join'))
        stamp(1)
        a(f'''
        s_waitcnt lgkmcnt(0)
        s_barrier
        s_cmp_lg_u32 s3, 0
        s_cbranch_scc1 {L('nocf')}
        s_cmp_eq_u32 s50, 0
        s_cbranch_scc1 {L('nocf')}
        s_mov_b64 exec, 1
        s_sub_u32 s12, s50, 1
        v_mov_b32 v34, s12
        v_mov_b32 v35, 0
        buffer_store_dword v34, v35, s[40:43], s72 offen {CO}
        s_mov_b64 exec, -1
        ''')
        a.label(L('nocf'))
        q = LdsQ(a)
        a('v_add_u32 v34, s73, v1')
        q.issue('pf0', 'ds_read_b128 v[10:13], v34')
        q.issue('pf1', 'ds_read_b128 v[14:17], v34 offset:1024')
        q.issue('pf2', 'ds_read_b128 v[20:23], v34 offset:2048')
        q.issue('pf3', 'ds_read_b128 v[28:31], v34 offset:3072')
        a(f'''
        s_cmp_eq_u32 s50, 0
        s_cbranch_scc1 {L('novm')}
        buffer_store_dwordx2 v[18:19], v3, s[40:43], s58 offen sc0 sc1
        buffer_store_dwordx2 v[26:27], v3, s[40:43], s58 offen offset:512 sc0 sc1
        s_add_u32 s58, s58, {128*KB}
        ''')
        a.label(L('novm'))

        def rd_mem(kt):
            b = 96 + (kt % 8) * 4
            q.issue(('m', kt), f'ds_read_b128 v[{b}:{b+3}], v9 offset:{MEML - OFR + kt*512}')

        def rd_wv(kt):
            for t in range(2):
                b = 64 + ((kt % 2) * 2 + t) * 4
                q.issue(('w', kt, t), f'ds_read_b128 v[{b}:{b+3}], v4 offset:{(t*16+kt)*1024}')

        def mf_v(kt):
            m = 96 + (kt % 8) * 4
            for t in range(2):
                q.need(('w', kt, t))
                b = 64 + ((kt % 2) * 2 + t) * 4
                acc = f'v[{56+t*4}:{59+t*4}]'
                a(f'v_mfma_f32_16x16x32_bf16 {acc}, v[{m}:{m+3}], v[{b}:{b+3}], {"0" if kt == 0 else acc}')

        rd_mem(0)
        rd_wv(0)
        rd_mem(1)
        rd_wv(1)
        for kt in range(2, 8):
            rd_mem(kt)
        for kt in range(16):
            q.need(('m', kt))
            if kt == 0:
                stamp(2)
            m = 96 + (kt % 8) * 4
            for ti in range(4):
                acc = f'v[{40+ti*4}:{43+ti*4}]'
                a(f'v_mfma_f32_16x16x32_bf16 {acc}, a[{ti*64+kt*4}:{ti*64+kt*4+3}], v[{m}:{m+3}], {"0" if kt == 0 else acc}')
            if kt < 8:
                mf_v(kt)
                rd_mem(kt + 8)
                rd_wv(kt + 2)
            if kt == 1:
                q.need('pf3')
                a(f'''
                s_and_b32 s12, s50, 3
                s_cmp_lg_u32 s12, 3
                s_cbranch_scc1 {L('nokv')}
                s_cmp_eq_u32 s50, 63
                s_cbranch_scc1 {L('nokv')}
                ''')
                kvwait(L('kv'))
                a.label(L('nokv'))
                pf_dma()
        stamp(3)
        a('''
        s_nop 7
        v_cvt_pk_bf16_f32 v34, v40, v41
        v_cvt_pk_bf16_f32 v35, v42, v43
        v_cvt_pk_bf16_f32 v36, v44, v45
        v_cvt_pk_bf16_f32 v37, v46, v47
        v_cvt_pk_bf16_f32 v40, v48, v49
        v_cvt_pk_bf16_f32 v41, v50, v51
        v_cvt_pk_bf16_f32 v42, v52, v53
        v_cvt_pk_bf16_f32 v43, v54, v55
        s_nop 1
        v_mfma_f32_16x16x32_bf16 v[44:47], v[40:43], v[34:37], 0
        v_mfma_f32_16x16x32_bf16 v[48:51], v[10:13], v[34:37], 0
        v_mfma_f32_16x16x32_bf16 v[52:55], v[14:17], v[34:37], 0
        buffer_store_dwordx4 v[40:43], v1, s[40:43], s57 offen sc0 sc1
        ''')
        mf_v(8)
        rd_wv(10)
        a('s_nop 3')
        q.issue('t0', 'ds_write_b128 v8, v[44:47]')
        q.issue('t1', 'ds_write_b128 v8, v[48:51] offset:512')
        q.issue('t2', 'ds_write_b128 v8, v[52:55] offset:1024')
        mf_v(9)
        rd_wv(11)
        q.need('t2')
        a('s_barrier')
        stamp(4)
        for t in range(3):
            q.issue(('r1', t), f'ds_read_b128 v[{80+t*4}:{83+t*4}], v7 offset:{t*512}')
        for t in range(3):
            q.issue(('r2', t), f'ds_read_b128 v[{44+t*4}:{47+t*4}], v0 offset:{t*512}')
        a('v_mov_b32 v95, 0xf149f2ca')
        mf_v(10)
        rd_wv(12)
        q.need(('r2', 2))
        for i in range(12):
            a(f'v_add_f32 v{44+i}, v{44+i}, v{80+i}')
        mf_v(11)
        rd_wv(13)
        for i in range(12):
            a(f'v_add_f32_dpp v{44+i}, v{44+i}, v{44+i} row_ror:8 row_mask:0xf bank_mask:0xf')
        for i in range(4):
            a(f'v_cndmask_b32 v{44+i}, v95, v{44+i}, s[62:63]')
        mf_v(12)
        rd_wv(14)
        a('''
        v_max3_f32 v92, v48, v49, v50
        v_max3_f32 v93, v51, v52, v53
        v_max3_f32 v94, v54, v55, v44
        v_max3_f32 v92, v92, v45, v46
        v_max3_f32 v93, v93, v94, v47
        v_max_f32 v92, v92, v93
        v_mov_b32 v93, v92
        ''')
        mf_v(13)
        rd_wv(15)
        a('''
        v_permlane32_swap_b32 v92, v93
        v_max_f32 v92, v92, v93
        v_mov_b32 v93, v92
        s_nop 1
        v_permlane16_swap_b32 v92, v93
        v_max_f32 v92, v92, v93
        v_mul_f32 v92, s69, v92
        ''')
        for i in range(12):
            a(f'v_fma_f32 v{44+i}, v{44+i}, s69, -v92')
        mf_v(14)
        for i in range(12):
            a(f'v_exp_f32 v{44+i}, v{44+i}')
            if i == 5:
                mf_v(15)
        a('''
        v_mov_b32 v86, 0
        v_mov_b32 v87, 0
        v_cvt_pk_bf16_f32 v80, v44, v45
        v_cvt_pk_bf16_f32 v81, v46, v47
        v_cvt_pk_bf16_f32 v82, v48, v49
        v_cvt_pk_bf16_f32 v83, v50, v51
        v_cvt_pk_bf16_f32 v84, v52, v53
        v_cvt_pk_bf16_f32 v85, v54, v55
        v_add_f32 v92, v44, v45
        v_add_f32 v93, v46, v47
        v_add_f32 v94, v48, v49
        v_add_f32 v95, v50, v51
        v_cvt_pk_bf16_f32 v18, v56, v57
        v_cvt_pk_bf16_f32 v19, v58, v59
        v_cvt_pk_bf16_f32 v26, v60, v61
        v_cvt_pk_bf16_f32 v27, v62, v63
        v_add_f32 v92, v92, v52
        v_add_f32 v93, v93, v53
        v_mfma_f32_16x16x32_bf16 v[64:67], v[18:21], v[80:83], 0
        v_mfma_f32_16x16x32_bf16 v[68:71], v[26:29], v[80:83], 0
        v_mfma_f32_16x16x32_bf16 v[64:67], v[22:25], v[84:87], v[64:67]
        v_mfma_f32_16x16x32_bf16 v[68:71], v[30:33], v[84:87], v[68:71]
        s_cmp_eq_u32 s50, 63
        s_cbranch_scc1 L_ch_fin
        v_add_f32 v94, v94, v54
        v_add_f32 v95, v95, v55
        v_add_f32 v92, v92, v93
        v_add_f32 v94, v94, v95
        v_add_f32 v92, v92, v94
        v_mov_b32 v93, v92
        s_nop 1
        v_permlane32_swap_b32 v92, v93
        v_add_f32 v92, v92, v93
        v_mov_b32 v93, v92
        s_nop 1
        v_permlane16_swap_b32 v92, v93
        v_add_f32 v92, v92, v93
        v_rcp_f32 v92, v92
        s_nop 0
        ''')
        for i in range(8):
            a(f'v_mul_f32 v{64+i}, v{64+i}, v92')
        a('''
        v_cvt_pk_bf16_f32 v72, v64, v65
        v_cvt_pk_bf16_f32 v73, v66, v67
        v_cvt_pk_bf16_f32 v74, v68, v69
        v_cvt_pk_bf16_f32 v75, v70, v71
        ds_write_b128 v2, v[72:75]
        s_waitcnt lgkmcnt(0)
        s_barrier
        ''')
        stamp(5)
        for ks in range(4):
            a(f'ds_read_b128 v[{96+ks*4}:{99+ks*4}], v9 offset:{ks*512}')
        a(f'''
        v_bfe_u32 v37, v6, 3, 1
        v_lshl_add_u32 v37, v37, 9, v5
        v_mov_b32 v120, -1
        v_mov_b32 v121, -1
        v_lshlrev_b32 v122, 4, v6
        s_add_u32 s12, s59, s68
        s_mov_b64 exec, s[76:77]
        buffer_store_dwordx2 v[120:121], v122, s[40:43], s12 offen {st}
        s_mov_b64 exec, -1
        ''')
        accs = [40, 44, 48, 52, 56, 60, 112, 116]

        def pstore(pr):
            d0, d1 = accs[2 * pr], accs[2 * pr + 1]
            for r in range(4):
                a(f'v_cndmask_b32 v{d0+r}, v{d1+r}, v{d0+r}, s[60:61]')
            a(f'buffer_store_dwordx4 v[{d0}:{d0+3}], v37, s[40:43], s53 offen offset:{pr*1024} {st}')
        a('s_waitcnt lgkmcnt(0)')
        for dtl in range(8):
            acc = f'v[{accs[dtl]}:{accs[dtl]+3}]'
            for ks in range(4):
                b = 128 + (dtl * 4 + ks) * 4
                a(f'v_mfma_f32_16x16x32_bf16 {acc}, v[{b}:{b+3}], v[{96+ks*4}:{99+ks*4}], {"0" if ks == 0 else acc}')
            if dtl in (3, 5, 7):
                pstore((dtl - 3) // 2)
        a('s_nop 7')
        pstore(3)
        stamp(6)
        a(f'''
        s_add_u32 s50, s50, 1
        s_add_u32 s12, s54, {128*KB}
        s_add_u32 s13, s54, {256*KB}
        s_add_u32 s14, s54, {384*KB}
        s_mov_b32 s19, {SPIN}
        ''')
        def pr_issue(b):
            for i, so in enumerate(('s54', 's12', 's13', 's14')):
                a(f'buffer_load_dwordx4 v[{b+i*4}:{b+i*4+3}], v39, s[40:43], {so} offen {ld}')

        def pr_check(b, lbl):
            a(f'''
            v_max3_u32 v34, v{b}, v{b+1}, v{b+2}
            v_max3_u32 v35, v{b+3}, v{b+4}, v{b+5}
            v_max3_u32 v36, v{b+6}, v{b+7}, v{b+8}
            v_max3_u32 v37, v{b+9}, v{b+10}, v{b+11}
            v_max3_u32 v34, v34, v{b+12}, v{b+13}
            v_max3_u32 v35, v35, v{b+14}, v{b+15}
            v_max3_u32 v34, v34, v36, v37
            v_max_u32 v34, v34, v35
            v_cmp_eq_u32 vcc, -1, v34
            s_cbranch_vccz {lbl}
            ''')
        if POLLMODE == 0:
            pr_issue(64)
            a.label(L('pr_loop'))
            pr_issue(80)
            a('s_waitcnt vmcnt(4)')
            pr_check(64, L('pr_okA'))
            pr_issue(64)
            a('s_waitcnt vmcnt(4)')
            pr_check(80, L('pr_okB'))
        elif POLLMODE == 9:
            for gi, so in enumerate(('s54', 's12', 's13', 's14')):
                b = 64 + gi * 4
                lbl = L(f'pr_l{gi}') if gi < 3 else L('pr_loop')
                nxt = L(f'pr_l{gi+1}') if gi < 2 else (L('pr_loop') if gi == 2 else L('pr_okA'))
                a.label(lbl)
                a(f'''
                buffer_load_dwordx4 v[{b}:{b+3}], v39, s[40:43], {so} offen {ld}
                s_waitcnt vmcnt(0)
                v_max3_u32 v34, v{b}, v{b+1}, v{b+2}
                v_max_u32 v34, v34, v{b+3}
                v_cmp_eq_u32 vcc, -1, v34
                s_cbranch_vccz {nxt}
                ''')
                if gi < 3:
                    a(f'''
                    s_sub_u32 s19, s19, 1
                    s_cmp_lg_u32 s19, 0
                    s_cbranch_scc1 {lbl}
                    s_branch L_ch_done
                    ''')
        else:
            a.label(L('pr_loop'))
            pr_issue(64)
            a('s_waitcnt vmcnt(0)')
            pr_check(64, L('pr_okA'))
            if POLLMODE >= 2:
                a(f's_sleep {POLLMODE-1}')
        a(f'''
        s_sub_u32 s19, s19, 1
        s_cmp_lg_u32 s19, 0
        s_cbranch_scc1 {L('pr_loop')}
        s_branch L_ch_done
        ''')
        a.label(L('pr_okB'))
        for r in range(4):
            a(f'v_add_f32 v{96+r}, v{80+r}, v{84+r}')
            a(f'v_add_f32 v{100+r}, v{88+r}, v{92+r}')
        a(f's_branch {L("pr_join")}')
        a.label(L('pr_okA'))
        for r in range(4):
            a(f'v_add_f32 v{96+r}, v{64+r}, v{68+r}')
            a(f'v_add_f32 v{100+r}, v{72+r}, v{76+r}')
        a.label(L('pr_join'))
        stamp(7)
        for r in range(4):
            a(f'v_add_f32 v{96+r}, v{96+r}, v{100+r}')
        a('s_nop 1')
        for r in range(4):
            a(f'v_add_f32_dpp v{96+r}, v{96+r}, v{96+r} row_ror:8 row_mask:0xf bank_mask:0xf')
        for r in range(4):
            a(f'v_mov_b32 v{100+r}, v{96+r}')
        a('s_nop 0')
        for r in range(4):
            a(f'v_permlane32_swap_b32 v{96+r}, v{100+r}')
        for r in range(4):
            a(f'v_add_f32 v{96+r}, v{96+r}, v{100+r}')
        for r in range(4):
            a(f'v_mov_b32 v{100+r}, v{96+r}')
        a('s_nop 0')
        for r in range(4):
            a(f'v_permlane16_swap_b32 v{96+r}, v{100+r}')
        for r in range(4):
            a(f'v_add_f32 v{96+r}, v{96+r}, v{100+r}')
        a(f'''
        v_cvt_pk_bf16_f32 v96, v96, v97
        v_cvt_pk_bf16_f32 v97, v98, v99
        v_lshlrev_b32 v98, 4, v6
        s_add_u32 s15, s52, s68
        s_mov_b64 exec, s[76:77]
        buffer_store_dwordx2 v[96:97], v98, s[40:43], s15 offen {st}
        s_mov_b64 exec, -1
        v_mov_b32 v100, -1
        v_mov_b32 v101, -1
        v_mov_b32 v102, -1
        v_mov_b32 v103, -1
        buffer_store_dwordx4 v[100:103], v39, s[40:43], s54 offen {st}
        buffer_store_dwordx4 v[100:103], v39, s[40:43], s12 offen {st}
        buffer_store_dwordx4 v[100:103], v39, s[40:43], s13 offen {st}
        buffer_store_dwordx4 v[100:103], v39, s[40:43], s14 offen {st}
        ''')
        stamp(8)
        if STAMP:
            a(f'''
            s_cmp_lg_u32 s3, 0
            s_cbranch_scc1 {L('nost')}
            s_lshl_b32 s12, s50, 6
            s_lshl_b32 s13, s4, 12
            s_add_u32 s12, s12, s13
            s_add_u32 s12, s12, {FLAGS + 65536}
            v_mov_b32 v35, 0
            ''')
            for i in range(9):
                a(f'v_mov_b32 v34, s{80+i}')
                a(f'buffer_store_dword v34, v35, s[40:43], s12 offen offset:{i*4}')
            a.label(L('nost'))
        a(f'''
        s_mov_b32 s12, s51
        s_mov_b32 s51, s52
        s_mov_b32 s52, s59
        s_mov_b32 s59, s12
        s_xor_b32 s53, s53, {512*KB}
        s_xor_b32 s54, s54, {512*KB}
        s_add_u32 s57, s57, {128*KB}
        s_branch {L('step')}
        ''')
    a.label('L_ch_fin')
    a(f'''
    buffer_store_dwordx2 v[18:19], v3, s[40:43], s58 offen sc0 sc1
    buffer_store_dwordx2 v[26:27], v3, s[40:43], s58 offen offset:512 sc0 sc1
    s_waitcnt vmcnt(0)
    s_barrier
    s_cmp_lg_u32 s3, 0
    s_cbranch_scc1 L_ch_done
    s_mov_b64 exec, 1
    v_mov_b32 v34, 64
    v_mov_b32 v35, 0
    buffer_store_dword v34, v35, s[40:43], s72 offen {CO}
    s_branch L_ch_done
    ''')
    a.label('L_w_entry')
    a('''
    s_load_dwordx2 s[10:11], s[0:1], 0
    s_load_dwordx2 s[12:13], s[0:1], 88
    s_waitcnt lgkmcnt(0)
    ''')
    srd(a, 84, 10, 2048 * 512 * 2)
    srd(a, 88, 12, 2048 * 512 * 2)
    a.label('L_w_loop')
    a(f'''
    s_barrier
    s_cmp_lg_u32 s3, 0
    s_cbranch_scc1 L_w_get
    s_mov_b64 exec, 1
    v_mov_b32 v10, 1
    v_mov_b32 v11, 64
    buffer_atomic_add v10, v11, s[44:47], 0 offen sc0 sc1
    v_mov_b32 v11, {ROLE + 4}
    s_waitcnt vmcnt(0)
    ds_write_b32 v11, v10
    s_waitcnt lgkmcnt(0)
    s_mov_b64 exec, -1
    ''')
    a.label('L_w_get')
    a(f'''
    s_barrier
    v_mov_b32 v11, {ROLE + 4}
    ds_read_b32 v10, v11
    v_and_b32 v6, 63, v0
    v_lshlrev_b32 v1, 4, v6
    v_lshlrev_b32 v3, 3, v6
    v_and_b32 v8, 15, v6
    v_lshrrev_b32 v9, 4, v6
    s_waitcnt lgkmcnt(0)
    v_readfirstlane_b32 s2, v10
    s_cmp_ge_u32 s2, {NTASK}
    s_cbranch_scc1 L_ch_done
    s_cmp_ge_u32 s2, 992
    s_cbranch_scc1 L_w_t3
    s_cmp_ge_u32 s2, 512
    s_cbranch_scc1 L_w_t2
    s_lshr_b32 s5, s2, 5
    s_and_b32 s4, s2, 31
    s_add_u32 s4, s4, 16
    s_branch L_w_g1
    ''')
    a.label('L_w_t2')
    a('''
    s_sub_u32 s6, s2, 512
    s_mul_i32 s5, s6, 2185
    s_lshr_b32 s5, s5, 16            ; tb
    s_mul_i32 s7, s5, 30
    s_sub_u32 s4, s6, s7             ; r
    s_add_u32 s7, s4, 32
    s_cmp_lt_u32 s4, 16
    s_cselect_b32 s4, s4, s7
    ''')
    a.label('L_w_g1')
    a('s_mov_b32 s92, s4')
    a('s_mov_b32 s93, s5')
    k_gemm1.gemm1_body(a, ST=CO)
    a(f'''
    s_waitcnt vmcnt(0)
    s_barrier
    s_cmp_lg_u32 s3, 0
    s_cbranch_scc1 L_w_loop
    s_lshl_b32 s6, s93, 6
    s_add_u32 s6, s6, s92
    s_lshl_b32 s6, s6, 2
    s_add_u32 s6, s6, {TILEF}
    s_mov_b64 exec, 1
    v_mov_b32 v10, 1
    v_mov_b32 v11, 0
    buffer_store_dword v10, v11, s[40:43], s6 offen {CO}
    s_mov_b64 exec, -1
    s_branch L_w_loop
    ''')

    def wpoll(lbl, nl):
        a(f'''
        s_mov_b64 exec, {(1 << nl) - 1}
        s_mov_b32 s19, {SPIN}
        ''')
        a.label(lbl + '_loop')
        a(f'''
        buffer_load_dword v12, v10, s[40:43], 0 offen {CO}
        s_waitcnt vmcnt(0)
        v_cmp_lt_u32 vcc, v12, v11
        s_cbranch_vccz {lbl}_ok
        s_sleep 3
        s_sub_u32 s19, s19, 1
        s_cmp_lg_u32 s19, 0
        s_cbranch_scc1 {lbl}_loop
        s_mov_b64 exec, -1
        s_branch L_ch_done
        ''')
        a.label(lbl + '_ok')
        a('s_mov_b64 exec, -1')

    a.label('L_w_t3')
    a(f'''
    s_sub_u32 s6, s2, 992
    s_lshr_b32 s92, s6, 5            ; sp
    s_and_b32 s7, s6, 31             ; r
    s_cmp_ge_u32 s7, 16
    s_cbranch_scc1 L_w_g2
    s_lshr_b32 s5, s7, 3
    s_lshl_b32 s6, s92, 1
    s_add_u32 s5, s5, s6             ; seg
    s_and_b32 s6, s7, 7
    s_lshl_b32 s6, s6, 2
    s_add_u32 s6, s6, s3             ; h
    s_lshr_b32 s10, s5, 2            ; tb
    s_lshl_b32 s10, s10, 6
    s_lshr_b32 s11, s6, 1
    s_add_u32 s10, s10, s11
    s_lshl_b32 s10, s10, 2
    s_add_u32 s10, s10, {TILEF}
    v_lshlrev_b32 v10, 6, v6
    v_add_u32 v10, s10, v10
    s_lshl_b32 s10, s6, 2
    s_add_u32 s10, s10, {CHF}
    v_mov_b32 v12, s10
    v_mov_b32 v11, 1
    s_add_u32 s10, s5, 1
    v_mov_b32 v13, s10
    v_cmp_eq_u32 vcc, 3, v6
    s_nop 1
    v_cndmask_b32 v10, v10, v12, vcc
    v_cndmask_b32 v11, v11, v13, vcc
    ''')
    wpoll('L_w_pa', 4)
    k_attn.attn_body(a, ST=CO, LD=CO)
    a(f'''
    s_waitcnt vmcnt(0)
    s_barrier
    s_cmp_lg_u32 s3, 0
    s_cbranch_scc1 L_w_loop
    s_lshl_b32 s6, s92, 2
    s_add_u32 s6, s6, {ATC}
    s_mov_b64 exec, 1
    v_mov_b32 v10, 1
    v_mov_b32 v11, 0
    buffer_atomic_add v10, v11, s[40:43], s6 offen sc1
    s_mov_b64 exec, -1
    s_branch L_w_loop
    ''')
    a.label('L_w_g2')
    a(f'''
    s_sub_u32 s4, s7, 16             ; db
    s_mov_b32 s5, s92                ; sp
    s_lshr_b32 s10, s92, 1
    s_lshl_b32 s10, s10, 8
    s_add_u32 s10, s10, {TILEF + 48*4}
    v_lshlrev_b32 v10, 2, v6
    v_add_u32 v10, s10, v10
    v_mov_b32 v11, 1
    ''')
    wpoll('L_w_pg', 14)

    def g2mid():
        a(f'''
        s_lshl_b32 s10, s92, 2
        s_add_u32 s10, s10, {ATC}
        v_mov_b32 v10, s10
        v_mov_b32 v11, 16
        ''')
        wpoll('L_w_pg2', 1)
    k_gemm2b.gemm2_body(a, LD=CO, mid=g2mid)
    a('s_branch L_w_loop')
    a.label('L_ch_done')
    rstamp(3)
    a.label('L_ch_end')
    a('s_endpgm')
    return kernel_desc(name, 256, 100, accum=256, nfv=512)
```

```python
from common import *

ND = 2
NSET = 8


def gemm2_body(a, LD='', mid=None):
    NF = ND + 4
    npart = 2 * ND * 4

    def accr(p, i, j):
        return ((p * ND + i) * 4 + j) * 4

    for r in range(npart * 4):
        a(f'v_accvgpr_write_b32 a{r}, 0')
    steps = [(0, k) for k in range(32)] + [(1, k) for k in range(14)]
    for p, (wbase, xbase, pitch, nk) in enumerate(((WO, OF, 128 * KB, 32), (WD, HF, 56 * KB, 14))):
        a(f'''
        s_mul_i32 s14, s4, {ND*pitch}
        s_mul_i32 s15, s3, {nk*KB}
        s_add_u32 s14, s14, s15
        s_add_u32 s14, s14, {wbase}
        s_mul_i32 s16, s5, {4*pitch}
        s_add_u32 s16, s16, s15
        s_add_u32 s16, s16, {xbase}
        ''')
        for i in range(ND):
            a(f's_add_u32 s{20+p*8+i}, s14, {i*pitch}')
        for j in range(4):
            a(f's_add_u32 s{20+p*8+ND+j}, s16, {j*pitch}')

    def run(steps):
        def loads(idx):
            p, k = steps[idx]
            b = 32 + (idx % NSET) * NF * 4
            if k and k % 4 == 0:
                for f in range(NF):
                    a(f's_add_u32 s{20+p*8+f}, s{20+p*8+f}, 4096')
            for f in range(NF):
                fl = LD if f >= ND else ''
                a(f'buffer_load_dwordx4 v[{b+f*4}:{b+f*4+3}], v1, s[40:43], s{20+p*8+f} offen offset:{(k%4)*1024} {fl}')

        n = len(steps)
        for idx in range(NSET - 1):
            loads(idx)
        for idx in range(n):
            if idx + NSET - 1 < n:
                loads(idx + NSET - 1)
                a(f's_waitcnt vmcnt({(NSET-1)*NF})')
            else:
                a(f's_waitcnt vmcnt({(n-1-idx)*NF})')
            p, k = steps[idx]
            b = 32 + (idx % NSET) * NF * 4
            for i in range(ND):
                for j in range(4):
                    c = accr(p, i, j)
                    a(f'v_mfma_f32_16x16x32_bf16 a[{c}:{c+3}], v[{b+i*4}:{b+i*4+3}], v[{b+(ND+j)*4}:{b+(ND+j)*4+3}], a[{c}:{c+3}]')

    run([(1, k) for k in range(14)])
    if mid:
        mid()
    run([(0, k) for k in range(32)])
    a(f'''
    s_nop 7
    s_nop 1
    s_mul_i32 s14, s3, {npart*KB}
    v_add_u32 v4, s14, v1
    ''')
    for t in range(npart):
        a(f'ds_write_b128 v4, a[{t*4}:{t*4+3}] offset:{t*1024}')
    a(f'''
    s_lshl_b32 s14, s5, 16
    s_lshl_b32 s15, s3, 14
    s_add_u32 s14, s14, s15
    s_mul_i32 s15, s4, {ND*32}
    s_add_u32 s14, s14, s15
    v_lshlrev_b32 v7, 10, v8
    v_lshl_add_u32 v7, v9, 3, v7
    v_add_u32 v7, s14, v7
    ''')
    for i in range(ND):
        a(f'buffer_load_dwordx2 v[{16+i*2}:{17+i*2}], v7, s[84:87], 0 offen offset:{i*32}')
    a(f'''
    s_waitcnt lgkmcnt(0)
    s_barrier
    s_lshl_b32 s14, s3, 10
    v_add_u32 v4, s14, v1
    ''')
    for p in range(2):
        for i in range(ND):
            for w in range(4):
                off = w * npart * KB + ((p * ND + i) * 4) * KB
                r = 32 + ((p * ND + i) * 4 + w) * 4
                a(f'ds_read_b128 v[{r}:{r+3}], v4 offset:{off}')
    a('s_waitcnt lgkmcnt(0)')
    for p in range(2):
        for i in range(ND):
            r = 32 + ((p * ND + i) * 4) * 4
            for e in range(4):
                a(f'v_add_f32 v{r+e}, v{r+e}, v{r+4+e}')
                a(f'v_add_f32 v{r+8+e}, v{r+8+e}, v{r+12+e}')
                a(f'v_add_f32 v{r+e}, v{r+e}, v{r+8+e}')
    a('s_waitcnt vmcnt(0)')
    for i in range(ND):
        ra = 32 + (i * 4) * 4
        rb = 32 + ((ND + i) * 4) * 4
        for hh in range(2):
            a(f'''
            v_cvt_pk_bf16_f32 v10, v{ra+2*hh}, v{ra+2*hh+1}
            v_cvt_pk_bf16_f32 v11, v{rb+2*hh}, v{rb+2*hh+1}
            v_lshlrev_b32 v12, 16, v10
            v_and_b32 v13, 0xffff0000, v10
            v_lshlrev_b32 v14, 16, v{16+i*2+hh}
            v_and_b32 v15, 0xffff0000, v{16+i*2+hh}
            v_add_f32 v12, v12, v14
            v_add_f32 v13, v13, v15
            v_cvt_pk_bf16_f32 v10, v12, v13
            v_lshlrev_b32 v12, 16, v10
            v_and_b32 v13, 0xffff0000, v10
            v_lshlrev_b32 v14, 16, v11
            v_and_b32 v15, 0xffff0000, v11
            v_add_f32 v12, v12, v14
            v_add_f32 v13, v13, v15
            v_cvt_pk_bf16_f32 v{24+i*2+hh}, v12, v13
            ''')
        a(f'buffer_store_dwordx2 v[{24+i*2}:{25+i*2}], v7, s[88:91], 0 offen offset:{i*32}')
```
